```python
import torch

def _softmax(x, axis=-1):
    return torch.softmax(x, dim=axis)

def _gelu(x):
    return torch.nn.functional.gelu(x, approximate='tanh')

def _silu(x):
    return torch.nn.functional.silu(x)

def _sigmoid(x):
    return torch.sigmoid(x)

def _layernorm(x, axis=-1, eps=1e-05):
    m = x.mean(dim=axis, keepdim=True)
    v = x.var(dim=axis, keepdim=True, unbiased=False)
    return (x - m) / torch.sqrt(v + eps)

def _scatter_add(tgt, idx, src, axis=0):
    return tgt.clone().index_add_(axis, idx, src)

def _segment_sum(src, seg, n):
    out = torch.zeros((n,) + src.shape[1:], dtype=src.dtype)
    return out.index_add_(0, seg, src)

def _pad(x, pw):
    flat = tuple((v for pair in reversed(pw) for v in pair))
    return torch.nn.functional.pad(x, flat)
kernel_name = 'gated_mix__mha_block__mixer_gmlp__prompt'

def setup_inputs():

    _w = lambda a: (lambda t: t.to(torch.bfloat16) if t.is_floating_point() else t)(torch.as_tensor(a))

    def _A_setup():
        B, S, D, H = (1, 2048, 1024, 32)
        return {'x': _w((lambda *s: torch.randn(*s, dtype=torch.bfloat16) * 0.05)(B, S, D)), 'wqkv': _w((lambda *s: torch.randn(*s, dtype=torch.bfloat16) * 0.8)(D, 3 * D)), 'wo': _w((lambda *s: torch.randn(*s, dtype=torch.bfloat16) * 0.1)(D, D))}
    _A_in = _A_setup()

    def _B_setup():
        B, S, D, F = (1, 2048, 1024, 3584)
        Fh = F // 2
        return {'x': _w((lambda *s: torch.randn(*s, dtype=torch.bfloat16) * 0.05)(B, S, D)), 'w_in': _w((lambda *s: torch.randn(*s, dtype=torch.bfloat16) * 0.4)(D, 2 * Fh)), 'w_sp': _w(0.01 * (lambda *s: torch.randn(*s, dtype=torch.bfloat16) * 0.4)(S, S)), 'b_sp': _w(1.0 + 0.01 * (lambda *s: torch.randn(*s, dtype=torch.bfloat16) * 0.05)(S)), 'w_out': _w((lambda *s: torch.randn(*s, dtype=torch.bfloat16) * 0.05)(Fh, D))}
    _B_in = _B_setup()
    return {'A_x': _A_in['x'], 'A_wqkv': _A_in['wqkv'], 'A_wo': _A_in['wo'], 'B_x': _B_in['x'], 'B_w_in': _B_in['w_in'], 'B_w_sp': _B_in['w_sp'], 'B_b_sp': _B_in['b_sp'], 'B_w_out': _B_in['w_out'], 'gate_w': _w((lambda *s: torch.randn(*s, dtype=torch.bfloat16) * 0.05)(1024) * 16.0)}

def reference(A_x, A_wqkv, A_wo, B_x, B_w_in, B_w_sp, B_b_sp, B_w_out, gate_w):

    def _A_ref(x, wqkv, wo):
        B, S, D = x.shape
        H = 32
        Dh = D // H
        qkv = (lambda x, *d: x.permute(*d))((x @ wqkv).reshape(B, S, 3, H, Dh), 2, 0, 3, 1, 4)
        q, k, v = (qkv[0], qkv[1], qkv[2])
        scores = torch.einsum('bhqd,bhkd->bhqk', q, k) * Dh ** (-0.5)
        p = _softmax(scores, axis=-1)
        o = torch.einsum('bhqk,bhkd->bhqd', p, v)
        return (lambda x, *d: x.permute(*d))(o, 0, 2, 1, 3).reshape(B, S, D) @ wo

    def _B_ref(x, w_in, w_sp, b_sp, w_out):
        B, S, D = x.shape
        F = w_in.shape[-1]
        Fh = F // 2
        z = _gelu(torch.einsum('bsd,df->bsf', x, w_in))
        z1 = z[..., :Fh].clone()
        z2 = _layernorm(z[..., Fh:], axis=-1)
        g = torch.einsum('ts,bsf->btf', w_sp, z2) + b_sp[None, :, None]
        return torch.einsum('bsf,fd->bsd', z1 * g, w_out)
    x = A_x
    g = _sigmoid((x * gate_w).sum(-1, keepdims=True))
    a = _A_ref(x, A_wqkv, A_wo)
    b = _B_ref(x, B_w_in, B_w_sp, B_b_sp, B_w_out)
    return g * a + (1 - g) * b
```

```python
import struct

def f2u(x):
    return struct.unpack("<I", struct.pack("<f", x))[0]

class Asm:
    def __init__(self):
        self.lines = []
        self._lab = 0
    def __call__(self, s):
        for l in s.split("\n"):
            l = l.strip()
            if l:
                self.lines.append("  " + l)
    def label(self, name):
        self.lines.append(name + ":")
    def raw(self, s):
        self.lines.append(s)
    def newlabel(self, p="L"):
        self._lab += 1
        return f"{p}_{self._lab}"
    def comment(self, s):
        self.lines.append("  ; " + s)
    def nop(self, n):
        while n > 0:
            k = min(n, 16)
            self(f"s_nop {k-1}")
            n -= k
    def text(self):
        return "\n".join(self.lines) + "\n"

def vr(a, n=1):
    return f"v{a}" if n == 1 else f"v[{a}:{a+n-1}]"
def ar(a, n=1):
    return f"a{a}" if n == 1 else f"a[{a}:{a+n-1}]"
def sr(a, n=1):
    return f"s{a}" if n == 1 else f"s[{a}:{a+n-1}]"

def srd(A, d, karg_off, nbytes):
    A(f"s_load_dwordx2 s[{d}:{d+1}], s[0:1], {karg_off}")
    def fin():
        A(f"s_mov_b32 s{d+2}, {nbytes}")
        A(f"s_mov_b32 s{d+3}, 0x00020000")
    return fin

def kernel_begin(A, name):
    A.raw(f".globl {name}")
    A.raw(".p2align 8")
    A.raw(f".type {name},@function")
    A.label(name)

def kernel_desc(name, nvgpr, accum, nsgpr=102):
    return f""".amdhsa_kernel {name}
  .amdhsa_next_free_vgpr {nvgpr}
  .amdhsa_next_free_sgpr {nsgpr}
  .amdhsa_accum_offset {accum}
  .amdhsa_group_segment_fixed_size 0
  .amdhsa_kernarg_size 96
  .amdhsa_user_sgpr_count 2
  .amdhsa_user_sgpr_kernarg_segment_ptr 1
  .amdhsa_system_sgpr_workgroup_id_x 1
  .amdhsa_float_denorm_mode_32 3
.end_amdhsa_kernel
"""

def interleave(A, mfmas, others, first=0, last=None):
    n = len(mfmas)
    if last is None:
        last = n - 1
    gaps = [[] for _ in range(n)]
    span = last - first + 1
    for i, o in enumerate(others):
        gaps[first + (i * span) // max(len(others), 1)].append(o)
    for m, g in zip(mfmas, gaps):
        A(m)
        for o in g:
            A(o)

MB = 1 << 20
WS_QF = 0
WS_KF = 4 * MB
WS_VF = 8 * MB
WS_Z1 = 12 * MB
WS_Z2 = 20 * MB
WS_AF = 28 * MB
WS_STAT = 40 * MB
WS_GATE = 41 * MB
WS_Z2N = 44 * MB
WS_SIZE = 64 * MB
KA_X, KA_WQKV, KA_WO, KA_BX, KA_WIN, KA_WSP, KA_BSP, KA_WOUT, KA_GATE, KA_OUT, KA_DBG, KA_WS = [8 * i for i in range(12)]

WS_DBG = 60 * MB
import os
PROF = os.environ.get("PROF", "0") == "1"
def stamp(A, idx, base=80):
    if not PROF: return
    A(f"s_memrealtime s[{base+4*idx}:{base+4*idx+1}]")
    A(f"s_memtime s[{base+4*idx+2}:{base+4*idx+3}]")
    A("s_waitcnt lgkmcnt(0)")
def stamp_flush(A, n, srd_ws, kidx, vt, base=80):
    if not PROF: return
    A("s_waitcnt vmcnt(0)")
    stamp(A, n - 1, base)
    A(f"s_lshl_b32 s{base-2}, s2, 2")
    A(f"s_add_u32 s{base-2}, s{base-2}, s{base-1}")
    A(f"s_lshl_b32 s{base-2}, s{base-2}, 6")
    A(f"s_add_u32 s{base-2}, s{base-2}, {WS_DBG + kidx * 0x40000}")
    A(f"v_mov_b32 v{vt}, 0")
    for i in range(n):
        A(f"v_mov_b32 v{vt+1}, s{base+4*i}")
        A(f"buffer_store_dword v{vt+1}, v{vt}, s[{srd_ws}:{srd_ws+3}], s{base-2} offen offset:{8*i}")
        A(f"v_mov_b32 v{vt+1}, s{base+4*i+2}")
        A(f"buffer_store_dword v{vt+1}, v{vt}, s[{srd_ws}:{srd_ws+3}], s{base-2} offen offset:{8*i+4}")
```

```python
from asmlib import *
import math

QSCALE = (32 ** -0.5) * math.log2(math.e)
GELU_A = -2.0 * math.sqrt(2.0 / math.pi) * math.log2(math.e)
GELU_B = GELU_A * 0.044715

WR = 208
XR = 221
XL = 223
XV = 225
WZV = 229
WQV = 231
L16 = 233
LANE = 234
GATEV = 235
T = 236
def acc(b, i): return (b * 4 + i) * 4
def xf(st, i): return st * 16 + i * 4
def wf(st, b): return 32 + st * 52 + b * 4
WBASE = 98304

S_X, S_WZ, S_WQ, S_WS, S_G = 4, 8, 12, 16, 20
sW, sRB, sJ = 24, 25, 26
sX, sWZ, sWQ = 27, 28, 29
sA, sB, sC = 30, 31, 32
sWb = 33
sCnt = 34
sT = 36

def gelu_pairs(A, regs, tmp, sCa, sCb, sOne):
    pass

def gen_k1(A, name):
    kernel_begin(A, name)
    A("s_cmp_ge_u32 s2, 256")
    A(f"s_cbranch_scc1 {name}_end")
    stamp(A, 0)
    fins = [srd(A, S_X, KA_X, 2048 * 2048), srd(A, S_WZ, KA_WIN, 1024 * 7168), srd(A, S_WQ, KA_WQKV, 1024 * 6144),
            srd(A, S_WS, KA_WS, WS_SIZE), srd(A, S_G, KA_GATE, 2048)]
    A(f"v_and_b32 v{LANE}, 63, v0")
    A(f"v_lshrrev_b32 v{T}, 6, v0")
    A(f"s_and_b32 s{sT}, s2, 7")
    A(f"v_readfirstlane_b32 s{sW}, v{T}")
    A(f"s_lshr_b32 s{sT+1}, s2, 3")
    A(f"s_mov_b32 s79, s{sW}")
    A(f"s_and_b32 s{sRB}, s{sT}, 1")
    A(f"s_lshl_b32 s{sRB}, s{sRB}, 2")
    A(f"s_and_b32 s{sT+2}, s{sT+1}, 3")
    A(f"s_add_u32 s{sRB}, s{sRB}, s{sT+2}")
    A(f"s_lshr_b32 s{sJ}, s{sT}, 1")
    A(f"s_lshl_b32 s{sJ}, s{sJ}, 3")
    A(f"s_lshr_b32 s{sT+2}, s{sT+1}, 2")
    A(f"s_add_u32 s{sJ}, s{sJ}, s{sT+2}")
    A(f"v_lshlrev_b32 v{L16}, 4, v{LANE}")
    A(f"s_lshl_b32 s{sT}, s{sRB}, 8")
    A(f"s_lshl_b32 s{sT+1}, s{sW}, 6")
    A(f"s_add_u32 s{sT}, s{sT}, s{sT+1}")
    A(f"v_lshrrev_b32 v{T}, 3, v{LANE}")
    A(f"v_add_u32 v{T+1}, s{sT}, v{T}")
    A(f"v_lshlrev_b32 v{T+1}, 11, v{T+1}")
    A(f"v_lshrrev_b32 v{T+2}, 4, v{LANE}")
    A(f"v_and_b32 v{T+2}, 1, v{T+2}")
    A(f"v_and_b32 v{T+3}, 7, v{LANE}")
    A(f"v_xor_b32 v{T+3}, v{T+3}, v{T+2}")
    for n in range(4):
        fx = ((n & 1) << 1) | (((n >> 1) & 1) << 2)
        A(f"v_xor_b32 v{T+4}, {fx}, v{T+3}")
        A(f"v_lshlrev_b32 v{T+4}, 4, v{T+4}")
        A(f"v_add_u32 v{T+4}, v{T+4}, v{T+1}")
        A(f"v_add_u32 v{XV+n}, {n * 8 * 2048 - n * 1024}, v{T+4}")
    A(f"v_lshrrev_b32 v{T}, 4, v{LANE}")
    A(f"s_and_b32 s{sT}, s{sW}, 1")
    A(f"s_lshl_b32 s{sT}, s{sT}, 2")
    A(f"v_or_b32 v{T+1}, s{sT}, v{T}")
    A(f"v_bfe_u32 v{T+2}, v{LANE}, 1, 3")
    A(f"v_xor_b32 v{T+2}, v{T+2}, v{T+1}")
    A(f"v_and_b32 v{T+3}, 1, v{LANE}")
    A(f"v_lshlrev_b32 v{T+3}, 4, v{T+3}")
    A(f"v_lshl_add_u32 v{T+3}, v{T+2}, 5, v{T+3}")
    A(f"s_lshl_b32 s{sT}, s{sW}, 3")
    A(f"v_add_u32 v{T}, s{sT}, v{T}")
    A(f"s_mul_i32 s{sT+1}, s{sJ}, 224")
    A(f"s_and_b32 s{sT+2}, s{sJ}, 1")
    A(f"s_lshl_b32 s{sT+3}, s{sT+2}, 5")
    A(f"s_sub_u32 s{sT+1}, s{sT+1}, s{sT+3}")
    A(f"s_mov_b32 s{sT+4}, 7168")
    A(f"v_mul_lo_u32 v{T+4}, v{T}, s{sT+4}")
    A(f"v_add3_u32 v{WZV}, v{T+4}, v{T+3}, s{sT+1}")
    A(f"s_sub_u32 s{sT+3}, 1, s{sT+2}")
    A(f"s_mul_i32 s{sT+3}, s{sT+3}, 7")
    A(f"v_mov_b32 v{T+5}, 0x80000000")
    A(f"v_cmp_eq_u32 vcc, s{sT+3}, v{T+2}")
    A.nop(2)
    A(f"v_cndmask_b32 v{WZV}, v{WZV}, v{T+5}, vcc")
    A(f"v_add_u32 v{WZV+1}, {4 * 7168 - 1024}, v{WZV}")
    A(f"s_mul_i32 s{sT+1}, s{sJ}, 192")
    A(f"s_mov_b32 s{sT+4}, 6144")
    A(f"v_mul_lo_u32 v{T+4}, v{T}, s{sT+4}")
    A(f"v_add3_u32 v{WQV}, v{T+4}, v{T+3}, s{sT+1}")
    A(f"v_cmp_lt_u32 vcc, 5, v{T+2}")
    A.nop(2)
    A(f"v_cndmask_b32 v{WQV}, v{WQV}, v{T+5}, vcc")
    A(f"v_add_u32 v{WQV+1}, {4 * 6144 - 1024}, v{WQV}")
    A(f"s_lshl_b32 s{sA}, s{sW}, 13")
    A(f"s_add_u32 s{sB}, s{sA}, 32768")
    A(f"s_add_u32 s{sC}, s{sA}, 65536")
    A(f"s_lshl_b32 s{sWb}, s{sW}, 12")
    A(f"s_add_u32 s{sWb}, s{sWb}, {WBASE}")
    A(f"s_lshl_b32 s{sT+6}, s{sRB}, 8")
    A(f"s_lshl_b32 s{sT+7}, s{sJ}, 3")
    A(f"s_add_u32 s{sT+6}, s{sT+6}, s{sT+7}")
    A(f"s_lshl_b32 s{sT+7}, s{sW}, 1")
    A(f"s_add_u32 s{sT+6}, s{sT+6}, s{sT+7}")
    A(f"s_lshl_b32 s{sT+7}, s{sT+6}, 11")
    A(f"v_lshlrev_b32 v{T+6}, 5, v{LANE}")
    A("s_waitcnt lgkmcnt(0)")
    for f in fins: f()
    A(f"buffer_load_dwordx4 v[0:3], v{T+6}, s[{S_X}:{S_X+3}], s{sT+7} offen")
    A(f"buffer_load_dwordx4 v[4:7], v{T+6}, s[{S_X}:{S_X+3}], s{sT+7} offen offset:16")
    A(f"buffer_load_dwordx4 v[8:11], v{T+6}, s[{S_X}:{S_X+3}], s{sT+7} offen offset:2048")
    A(f"buffer_load_dwordx4 v[12:15], v{T+6}, s[{S_X}:{S_X+3}], s{sT+7} offen offset:2064")
    A(f"buffer_load_dwordx4 v[16:19], v{T+6}, s[{S_G}:{S_G+3}], 0 offen")
    A(f"buffer_load_dwordx4 v[20:23], v{T+6}, s[{S_G}:{S_G+3}], 0 offen offset:16")

    def dma_x(slot_s, half):
        out = [f"s_add_u32 m0, s{slot_s}, {half * 4096}"]
        for n in range(4):
            out.append(f"buffer_load_dwordx4 v{XV+n}, s[{S_X}:{S_X+3}], s{sX} offen offset:{n*1024} lds")
        return out
    def dma_w(slot):
        return [f"s_add_u32 m0, s{sWb}, {slot * 16384}",
                f"buffer_load_dwordx4 v{WZV}, s[{S_WZ}:{S_WZ+3}], s{sWZ} offen lds",
                f"buffer_load_dwordx4 v{WZV+1}, s[{S_WZ}:{S_WZ+3}], s{sWZ} offen offset:1024 lds",
                f"s_add_u32 m0, s{sWb}, {slot * 16384 + 2048}",
                f"buffer_load_dwordx4 v{WQV}, s[{S_WQ}:{S_WQ+3}], s{sWQ} offen lds",
                f"buffer_load_dwordx4 v{WQV+1}, s[{S_WQ}:{S_WQ+3}], s{sWQ} offen offset:1024 lds"]
    def emit_dma(lst):
        for x in lst:
            A(x)
            if x.startswith("s_add_u32 m0"): A("s_nop 0")
    adv_w = [f"s_add_u32 s{sWZ}, s{sWZ}, {32*7168}", f"s_add_u32 s{sWQ}, s{sWQ}, {32*6144}"]
    A(f"s_mov_b32 s{sX}, 0")
    A(f"s_mov_b32 s{sWZ}, 0")
    A(f"s_mov_b32 s{sWQ}, 0")
    emit_dma(dma_x(sA, 0))
    emit_dma(dma_w(0)); emit_dma(adv_w)
    A(f"s_mov_b32 s{sX}, 65536"); emit_dma(dma_x(sA, 1))
    emit_dma(dma_w(1)); emit_dma(adv_w)
    A(f"s_mov_b32 s{sX}, 128"); emit_dma(dma_x(sB, 0))
    emit_dma(dma_w(2)); emit_dma(adv_w)
    A(f"s_mov_b32 s{sX}, {128+65536}"); emit_dma(dma_x(sB, 1))
    emit_dma(dma_w(3)); emit_dma(adv_w)
    A(f"s_mov_b32 s{sX}, 256"); emit_dma(dma_x(sC, 0))
    A(f"s_mov_b32 s{sX}, {256+65536}")
    A(f"v_and_b32 v{T}, 15, v{LANE}")
    A(f"v_lshrrev_b32 v{T+1}, 2, v{T}")
    A(f"v_lshlrev_b32 v{T+1}, 3, v{T+1}")
    A(f"v_and_b32 v{T+2}, 3, v{T}")
    A(f"v_add_u32 v{T+1}, v{T+1}, v{T+2}")
    A(f"v_lshlrev_b32 v{T+1}, 7, v{T+1}")
    A(f"v_lshrrev_b32 v{T+2}, 1, v{T}")
    A(f"v_lshrrev_b32 v{T+3}, 4, v{LANE}")
    A(f"v_xor_b32 v{T+3}, v{T+3}, v{T+2}")
    A(f"v_lshl_add_u32 v{XL}, v{T+3}, 4, v{T+1}")
    A(f"v_xor_b32 v{XL+1}, 64, v{XL}")
    A(f"v_lshrrev_b32 v{T}, 4, v{LANE}")
    A(f"v_bfe_u32 v{T+1}, v{LANE}, 2, 2")
    A(f"v_and_b32 v{T+2}, 1, v{T}")
    A(f"v_lshl_or_b32 v{T+2}, v{T+2}, 2, v{T+1}")
    A(f"v_lshlrev_b32 v{T+3}, 12, v{T}")
    A(f"v_lshl_add_u32 v{T+3}, v{T+1}, 8, v{T+3}")
    A(f"v_and_b32 v{T+4}, 3, v{LANE}")
    A(f"v_lshl_add_u32 v{T+3}, v{T+4}, 3, v{T+3}")
    A(f"v_add_u32 v{T+3}, {WBASE}, v{T+3}")
    A(f"s_and_b32 s{sT+2}, s{sJ}, 1")
    for b in range(7):
        A(f"s_add_u32 s{sT+3}, s{sT+2}, {b}")
        A(f"v_xor_b32 v{T+4}, s{sT+3}, v{T+2}")
        A(f"v_lshl_add_u32 v{WR+b}, v{T+4}, 5, v{T+3}")
    for b in range(6):
        A(f"v_xor_b32 v{T+4}, {b}, v{T+2}")
        A(f"v_lshl_add_u32 v{WR+7+b}, v{T+4}, 5, v{T+3}")
    for r in range(40, 208):
        A(f"v_mov_b32 v{r}, 0")
    A("s_waitcnt vmcnt(36)")
    A("v_mov_b32 v24, 0")
    A("v_mov_b32 v25, 0")
    for r in range(8):
        A(f"v_lshlrev_b32 v26, 16, v{16+r}")
        A(f"v_and_b32 v27, 0xffff0000, v{16+r}")
        for row in range(2):
            A(f"v_lshlrev_b32 v28, 16, v{row*8+r}")
            A(f"v_and_b32 v29, 0xffff0000, v{row*8+r}")
            A(f"v_fmac_f32 v{24+row}, v26, v28")
            A(f"v_fmac_f32 v{24+row}, v27, v29")
    for sh in (8, 4, 2, 1):
        A.nop(2)
        A(f"v_add_f32_dpp v24, v24, v24 row_ror:{sh} row_mask:0xf bank_mask:0xf")
        A(f"v_add_f32_dpp v25, v25, v25 row_ror:{sh} row_mask:0xf bank_mask:0xf")
    A.nop(2)
    for row in range(2):
        for q in range(4):
            A(f"v_readlane_b32 s{sT+8+row*4+q}, v{24+row}, {16*q}")
    A.nop(4)
    for row in range(2):
        A(f"v_mov_b32 v{26+row}, s{sT+8+row*4}")
        for q in range(1, 4):
            A(f"v_add_f32 v{26+row}, s{sT+8+row*4+q}, v{26+row}")
    A(f"v_cmp_eq_u32 vcc, 1, v{LANE}")
    A.nop(2)
    A("v_cndmask_b32 v26, v26, v27, vcc")
    A(f"v_mul_f32 v26, {hex(f2u(-math.log2(math.e)))}, v26")
    A("v_exp_f32 v26, v26")
    A.nop(1)
    A("v_add_f32 v26, 1.0, v26")
    A(f"v_rcp_f32 v{GATEV}, v26")
    for r in range(0, 40):
        A(f"v_mov_b32 v{r}, 0")

    def reads(snext, xkk):
        st = snext & 1
        slot = snext % 4
        out = []
        for i in range(4):
            out.append(f"ds_read_b128 {ar(xf(st,i),4)}, v{XR} offset:{(i>>1)*4096+(i&1)*512}")
        for b in range(13):
            for t in range(2):
                off = slot * 16384 + t * 1024 + (2048 if b >= 7 else 0)
                out.append(f"ds_read_b64_tr_b16 {ar(wf(st,b)+2*t,2)}, v{WR+b} offset:{off}")
        return out
    A("s_waitcnt vmcnt(24)")
    A("s_barrier")
    A(f"v_add_u32 v{XR}, s{sA}, v{XL}")
    for r in reads(0, 0): A(r)
    A("s_waitcnt vmcnt(16) lgkmcnt(0)")
    A("s_barrier")

    stamp(A, 1)
    A(f"s_cmp_lt_u32 s{sJ}, 16")
    A(f"s_cbranch_scc1 {name}_v0")
    A(f"s_cmp_lt_u32 s{sJ}, 21")
    A(f"s_cbranch_scc1 {name}_v1")
    A(f"s_cmp_eq_u32 s{sJ}, 21")
    A(f"s_cbranch_scc1 {name}_v2")
    A(f"s_branch {name}_v3")

    variants = {0: (False, (False, False, False)), 1: (True, (False, False, False)), 2: (True, (False, True, True)), 3: (True, (True, True, True))}
    for v, (z2, vt) in variants.items():
        ax = [z2] * 7 + [vt[0]] * 2 + [vt[1]] * 2 + [vt[2]] * 2
        def mfmas(s):
            st = s & 1
            out = []
            for b in range(13):
                for i in range(4):
                    X, W = ar(xf(st, i), 4), ar(wf(st, b), 4)
                    a0, b0 = (X, W) if ax[b] else (W, X)
                    out.append(f"v_mfma_f32_16x16x32_bf16 {vr(acc(b,i),4)}, {a0}, {b0}, {vr(acc(b,i),4)}")
            return out
        def substep(q, dma, do_reads=True, endwait="s_waitcnt vmcnt(16) lgkmcnt(0)", barrier=True, extra=[]):
            rd_slot = [sA, sB, sB, sC][q]
            dma_slot = [sC, sA, sA, sB][q]
            half = [1, 0, 1, 0][q]
            kk = (q + 1) & 1
            rds = reads(q + 1, kk) if do_reads else []
            ds = (dma_w(q) + dma_x(dma_slot, half)) if dma else []
            seq = [f"v_add_u32 v{XR}, s{rd_slot}, v{XL+kk}"] if do_reads else []
            ri = di = 0
            while ri < len(rds) or di < len(ds):
                for _ in range(3):
                    if ri < len(rds): seq.append(rds[ri]); ri += 1
                if di < len(ds): seq.append(ds[di]); di += 1
            if dma:
                seq += adv_w
                seq.append(f"s_add_u32 s{sX}, s{sX}, 65536" if half == 0 else f"s_sub_u32 s{sX}, s{sX}, {65536-128}")
            seq += extra
            m = mfmas(q)
            assert len(seq) <= len(m), len(seq)
            for k in range(len(m)):
                A(m[k])
                if k < len(seq): A(seq[k])
            if endwait: A(endwait)
            if barrier: A("s_barrier")
        A.raw(".p2align 6")
        A.label(f"{name}_v{v}")
        A(f"s_mov_b32 s{sCnt}, 7")
        A.label(f"{name}_v{v}_loop")
        for q in range(4):
            ex = []
            if q == 3:
                ex = [f"s_mov_b32 s{sT}, s{sC}", f"s_mov_b32 s{sC}, s{sB}", f"s_mov_b32 s{sB}, s{sA}", f"s_mov_b32 s{sA}, s{sT}",
                      f"s_sub_u32 s{sCnt}, s{sCnt}, 1"]
            substep(q, True, extra=ex)
        A(f"s_cmp_lg_u32 s{sCnt}, 0")
        A(f"s_cbranch_scc1 {name}_v{v}_loop")
        substep(0, False, endwait="s_waitcnt vmcnt(8) lgkmcnt(0)")
        substep(1, False, endwait="s_waitcnt vmcnt(4) lgkmcnt(0)")
        substep(2, False, endwait="s_waitcnt lgkmcnt(0)", barrier=False)
        substep(3, False, do_reads=False, endwait=None, barrier=False)
        A.nop(8)
        stamp(A, 2)
        E = 208
        A(f"v_lshlrev_b32 v{T}, 2, v{LANE}")
        A(f"v_mov_b32 v{T+1}, 0x80000000")
        A(f"v_cmp_lt_u32 vcc, 1, v{LANE}")
        A(f"s_lshl_b32 s{sT+7}, s{sT+6}, 2")
        A(f"s_add_u32 s{sT+7}, s{sT+7}, {WS_GATE}")
        A(f"v_cndmask_b32 v{T}, v{T}, v{T+1}, vcc")
        A(f"buffer_store_dword v{GATEV}, v{T}, s[{S_WS}:{S_WS+3}], s{sT+7} offen")
        A(f"s_lshl_b32 s{sT+8}, s{sRB}, 3")
        A(f"s_lshl_b32 s{sT+9}, s{sW}, 1")
        A(f"s_add_u32 s{sT+8}, s{sT+8}, s{sT+9}")
        tsel = 0
        def tmp4():
            nonlocal tsel
            tsel = (tsel + 1) % 4
            return E + 4 * tsel
        for u in range(3):
            b0, b1 = 7 + 2 * u, 8 + 2 * u
            A(f"s_mul_i32 s{sT+10}, s{sJ}, 3")
            A(f"s_add_u32 s{sT+10}, s{sT+10}, {u}")
            if not vt[u]:
                A(f"s_lshl_b32 s{sT+11}, s{sT+10}, 17")
                A(f"s_lshl_b32 s{sT+12}, s{sT+8}, 11")
                A(f"s_add_u32 s{sT+11}, s{sT+11}, s{sT+12}")
                A(f"s_cmp_lt_u32 s{sT+10}, 32")
                A(f"s_cselect_b32 s{sT+14}, {hex(f2u(QSCALE))}, 1.0")
                A(f"s_mov_b32 s{sT+15}, s{sT+14}")
                for i in range(4):
                    t = tmp4()
                    for bb in (b0, b1):
                        for h in range(2):
                            r = acc(bb, i) + 2 * h
                            A(f"v_pk_mul_f32 {vr(r,2)}, {vr(r,2)}, s[{sT+14}:{sT+15}]")
                    A(f"v_cvt_pk_bf16_f32 v{t}, v{acc(b0,i)}, v{acc(b0,i)+1}")
                    A(f"v_cvt_pk_bf16_f32 v{t+1}, v{acc(b0,i)+2}, v{acc(b0,i)+3}")
                    A(f"v_cvt_pk_bf16_f32 v{t+2}, v{acc(b1,i)}, v{acc(b1,i)+1}")
                    A(f"v_cvt_pk_bf16_f32 v{t+3}, v{acc(b1,i)+2}, v{acc(b1,i)+3}")
                    A(f"buffer_store_dwordx4 {vr(t,4)}, v{L16}, s[{S_WS}:{S_WS+3}], s{sT+11} offen offset:{i*1024}")
            else:
                A(f"s_lshl_b32 s{sT+11}, s{sT+10}, 17")
                A(f"s_lshl_b32 s{sT+12}, s{sT+8}, 11")
                A(f"s_add_u32 s{sT+11}, s{sT+11}, s{sT+12}")
                for p in range(2):
                    for db, bb in enumerate((b0, b1)):
                        t = tmp4()
                        A(f"v_cvt_pk_bf16_f32 v{t}, v{acc(bb,2*p)}, v{acc(bb,2*p)+1}")
                        A(f"v_cvt_pk_bf16_f32 v{t+1}, v{acc(bb,2*p)+2}, v{acc(bb,2*p)+3}")
                        A(f"v_cvt_pk_bf16_f32 v{t+2}, v{acc(bb,2*p+1)}, v{acc(bb,2*p+1)+1}")
                        A(f"v_cvt_pk_bf16_f32 v{t+3}, v{acc(bb,2*p+1)+2}, v{acc(bb,2*p+1)+3}")
                        A(f"buffer_store_dwordx4 {vr(t,4)}, v{L16}, s[{S_WS}:{S_WS+3}], s{sT+11} offen offset:{p*2048+db*1024}")
        G0 = 112
        SUM = 128
        SQ = 144
        CA = 160
        A(f"s_mov_b32 s{sT+16}, {hex(f2u(GELU_B))}")
        A(f"s_mov_b32 s{sT+17}, {hex(f2u(GELU_B))}")
        A(f"s_mov_b32 s{sT+18}, 1.0")
        A(f"s_mov_b32 s{sT+19}, 1.0")
        A.nop(2)
        A(f"v_mov_b32 v{CA}, {hex(f2u(GELU_A))}")
        A(f"v_mov_b32 v{CA+1}, {hex(f2u(GELU_A))}")
        if z2:
            A(f"s_mul_i32 s{sT+11}, s{sT+8}, {112*1024}")
            A(f"s_mul_i32 s{sT+12}, s{sJ}, {7*1024}")
            A(f"s_add_u32 s{sT+11}, s{sT+11}, s{sT+12}")
            A(f"s_add_u32 s{sT+11}, s{sT+11}, {WS_Z2 - 16*7*1024}")
            pstr, fstr = 112 * 1024, 1024
        else:
            A(f"s_mul_i32 s{sT+11}, s{sJ}, {7*65536}")
            A(f"s_lshl_b32 s{sT+12}, s{sT+8}, 10")
            A(f"s_add_u32 s{sT+11}, s{sT+11}, s{sT+12}")
            A(f"s_add_u32 s{sT+11}, s{sT+11}, {WS_Z1}")
            pstr, fstr = 1024, 65536
        for fb in range(7):
            base = acc(fb, 0)
            P = [base + 2 * k for k in range(8)]
            Tm = [G0 + 2 * k for k in range(8)]
            for k in range(8): A(f"v_pk_mul_f32 {vr(Tm[k],2)}, {vr(P[k],2)}, {vr(P[k],2)}")
            for k in range(8): A(f"v_pk_fma_f32 {vr(Tm[k],2)}, {vr(Tm[k],2)}, s[{sT+16}:{sT+17}], {vr(CA,2)}")
            for k in range(8): A(f"v_pk_mul_f32 {vr(Tm[k],2)}, {vr(Tm[k],2)}, {vr(P[k],2)}")
            for k in range(16): A(f"v_exp_f32 v{G0+k}, v{G0+k}")
            for k in range(8): A(f"v_pk_add_f32 {vr(Tm[k],2)}, {vr(Tm[k],2)}, s[{sT+18}:{sT+19}]")
            for k in range(16): A(f"v_rcp_f32 v{G0+k}, v{G0+k}")
            for k in range(8): A(f"v_pk_mul_f32 {vr(P[k],2)}, {vr(P[k],2)}, {vr(Tm[k],2)}")
            if z2:
                for k in range(8):
                    if fb == 0:
                        A(f"v_pk_mul_f32 {vr(SQ+2*k,2)}, {vr(P[k],2)}, {vr(P[k],2)}")
                    else:
                        A(f"v_pk_fma_f32 {vr(SQ+2*k,2)}, {vr(P[k],2)}, {vr(P[k],2)}, {vr(SQ+2*k,2)}")
                        src = base - 16 if fb == 1 else SUM
                        A(f"v_pk_add_f32 {vr(SUM+2*k,2)}, {vr(src+2*k,2)}, {vr(P[k],2)}")
            for p in range(2):
                t = tmp4()
                for k in range(4):
                    A(f"v_cvt_pk_bf16_f32 v{t+k}, v{base+8*p+2*k}, v{base+8*p+2*k+1}")
                A(f"s_add_u32 s{sT+12}, s{sT+11}, {fb*fstr+p*pstr}")
                A(f"buffer_store_dwordx4 {vr(t,4)}, v{L16}, s[{S_WS}:{S_WS+3}], s{sT+12} offen")
        if z2:
            for sh in (8, 4, 2, 1):
                for k in range(32):
                    A(f"v_add_f32_dpp v{SUM+k}, v{SUM+k}, v{SUM+k} row_ror:{sh} row_mask:0xf bank_mask:0xf")
            A(f"v_lshrrev_b32 v{T}, 4, v{LANE}")
            A(f"v_lshlrev_b32 v{T}, 5, v{T}")
            A(f"v_and_b32 v{T+2}, 15, v{LANE}")
            A(f"v_mov_b32 v{T+1}, 0x80000000")
            A(f"v_cmp_ne_u32 vcc, 0, v{T+2}")
            A(f"s_lshl_b32 s{sT+11}, s{sRB}, 4")
            A(f"s_add_u32 s{sT+11}, s{sT+11}, s{sJ}")
            A(f"s_lshl_b32 s{sT+11}, s{sT+11}, 11")
            A(f"v_cndmask_b32 v{T}, v{T}, v{T+1}, vcc")
            A(f"s_lshl_b32 s{sT+12}, s{sW}, 8")
            A(f"s_add_u32 s{sT+11}, s{sT+11}, s{sT+12}")
            A(f"s_add_u32 s{sT+11}, s{sT+11}, {WS_STAT - 16*2048}")
            for st, R in enumerate((SUM, SQ)):
                for i in range(4):
                    A(f"buffer_store_dwordx4 {vr(R+4*i,4)}, v{T}, s[{S_WS}:{S_WS+3}], s{sT+11} offen offset:{st*1024+(i>>1)*128+(i&1)*16}")
        stamp(A, 3)
        stamp_flush(A, 5, S_WS, 0, T)
        A("s_endpgm")
    A.label(f"{name}_end")
    A("s_endpgm")
    return kernel_desc(name, 392, 256)
```

```python
from asmlib import *

def gen_k1b(A, name):
    kernel_begin(A, name)
    A("s_cmp_ge_u32 s2, 256")
    A(f"s_cbranch_scc1 {name}_end")
    fin = srd(A, 4, KA_WS, WS_SIZE)
    A("v_and_b32 v1, 63, v0")
    A("v_lshrrev_b32 v2, 6, v0")
    A("s_lshr_b32 s10, s2, 2")
    A("v_readfirstlane_b32 s9, v2")
    A("s_and_b32 s11, s2, 3")
    A("s_mul_i32 s11, s11, 28")
    A("v_lshlrev_b32 v3, 4, v1")
    A("s_mul_i32 s12, s9, 7")
    A("s_add_u32 s11, s11, s12")
    A("s_mul_i32 s12, s10, 112")
    A("s_add_u32 s11, s11, s12")
    A("s_lshl_b32 s11, s11, 10")
    A(f"s_add_u32 s13, s11, {WS_Z2}")
    A(f"s_add_u32 s14, s11, {WS_Z2N}")
    A("v_and_b32 v4, 31, v1")
    A("v_lshrrev_b32 v5, 5, v1")
    A("v_lshlrev_b32 v5, 14, v5")
    A("v_lshl_add_u32 v5, v4, 2, v5")
    A("s_lshr_b32 s15, s10, 3")
    A("s_lshl_b32 s15, s15, 15")
    A("s_and_b32 s16, s10, 7")
    A("s_lshl_b32 s16, s16, 7")
    A("s_add_u32 s15, s15, s16")
    A(f"s_add_u32 s15, s15, {WS_STAT}")
    A("s_waitcnt lgkmcnt(0)")
    fin()
    for sl in range(8):
        A(f"buffer_load_dword v{8+sl}, v5, s[4:7], s15 offen")
        A(f"buffer_load_dword v{16+sl}, v5, s[4:7], s15 offen offset:1024")
        A("s_add_u32 s15, s15, 2048")
    for i in range(7):
        A(f"buffer_load_dwordx4 v[{32+4*i}:{35+4*i}], v3, s[4:7], s13 offen")
        A("s_add_u32 s13, s13, 1024")
    A("s_waitcnt vmcnt(7)")
    for sl in range(1, 8):
        A(f"v_add_f32 v8, v8, v{8+sl}")
        A(f"v_add_f32 v16, v16, v{16+sl}")
    A("v_mov_b32 v9, v8")
    A("v_mov_b32 v17, v16")
    A.nop(2)
    A("v_permlane32_swap_b32 v8, v9")
    A("v_permlane32_swap_b32 v16, v17")
    A.nop(2)
    A("v_add_f32 v8, v8, v9")
    A("v_add_f32 v16, v16, v17")
    A(f"v_mul_f32 v8, {hex(f2u(1/1792))}, v8")
    A(f"v_mul_f32 v16, {hex(f2u(1/1792))}, v16")
    A("v_fma_f32 v16, -v8, v8, v16")
    A("v_max_f32 v16, 0, v16")
    A(f"v_add_f32 v16, {hex(f2u(1e-5))}, v16")
    A("v_rsq_f32 v10, v16")
    A.nop(1)
    A("v_mul_f32 v11, v8, v10")
    A("v_sub_f32 v11, 0, v11")
    A("s_lshl_b32 s16, s9, 8")
    A("v_lshlrev_b32 v12, 3, v4")
    A("v_add_u32 v12, s16, v12")
    A("ds_write_b64 v12, v[10:11]")
    A("v_lshrrev_b32 v13, 4, v1")
    A("v_lshlrev_b32 v13, 6, v13")
    A("v_add_u32 v13, s16, v13")
    A("s_waitcnt lgkmcnt(0)")
    for k in range(4):
        A(f"ds_read_b128 v[{16+4*k}:{19+4*k}], v13 offset:{16*k}")
    A("s_waitcnt vmcnt(0) lgkmcnt(0)")
    for i in range(7):
        for k in range(4):
            r = 32 + 4 * i + k
            A(f"v_lshlrev_b32 v8, 16, v{r}")
            A(f"v_and_b32 v9, 0xffff0000, v{r}")
            A(f"v_fma_f32 v8, v8, v{16+4*k}, v{17+4*k}")
            A(f"v_fma_f32 v9, v9, v{18+4*k}, v{19+4*k}")
            A(f"v_cvt_pk_bf16_f32 v{r}, v8, v9")
        A(f"buffer_store_dwordx4 v[{32+4*i}:{35+4*i}], v3, s[4:7], s14 offen")
        A("s_add_u32 s14, s14, 1024")
    A.label(f"{name}_end")
    A("s_endpgm")
    return kernel_desc(name, 64, 64)
```

```python
from asmlib import *
import math, os

K2_GRID = 256 + 224
NS_SP = 4
K2_LDS = NS_SP * 32768

S_ = [0, 16]; O_ = [32, 48]; CI = [64, 80]; P_ = [96, 104]
def QF_(X, m): return 112 + X * 8 + m * 4
def KB(buf, m): return 128 + buf * 8 + m * 4
def VB(buf, m): return 144 + buf * 8 + m * 4
L_ = [160, 164]; ONES = 168
AR, AL, L16, LANE = 172, 173, 174, 175
GV = [176, 177]
T = 178
S_K, S_V, S_WS = 4, 8, 12
sW, sHead, sQb, sOff, sCnt = 16, 17, 18, 19, 20
sSl = [21, 22, 23]
sT = 24

def mf32(d, a, b, c): return f"v_mfma_f32_32x32x16_bf16 {vr(d,16)}, {vr(a,4)}, {vr(b,4)}, {c}"
def mf16(d, a, b): return f"v_mfma_f32_16x16x32_bf16 {vr(d,4)}, {vr(a,4)}, {vr(b,4)}, {vr(d,4)}"

def gen_attn(A, name):
    stamp(A, 0)
    A(f"s_load_dwordx2 s[{S_WS}:{S_WS+1}], s[0:1], {KA_WS}")
    A(f"v_and_b32 v{LANE}, 63, v0")
    A(f"v_lshrrev_b32 v{T}, 6, v0")
    A(f"s_and_b32 s{sT}, s2, 7")
    A(f"v_readfirstlane_b32 s{sW}, v{T}")
    A(f"s_lshr_b32 s{sT+1}, s2, 3")
    A(f"s_lshl_b32 s{sHead}, s{sT}, 2")
    A(f"s_lshr_b32 s{sT+2}, s{sT+1}, 3")
    A(f"s_add_u32 s{sHead}, s{sHead}, s{sT+2}")
    A(f"s_and_b32 s{sQb}, s{sT+1}, 7")
    A(f"s_mov_b32 s79, s{sW}")
    A(f"v_lshlrev_b32 v{L16}, 4, v{LANE}")
    A(f"s_lshl_b32 s{sT+3}, s{sHead}, 17")
    A(f"s_lshl_b32 s{sOff}, s{sW}, 11")
    A(f"s_mov_b32 s{sSl[0]}, 0")
    A(f"s_mov_b32 s{sSl[1]}, 16384")
    A(f"s_mov_b32 s{sSl[2]}, 32768")
    A(f"v_bfe_u32 v{T}, v{LANE}, 4, 1")
    A(f"v_lshrrev_b32 v{T+1}, 5, v{LANE}")
    A(f"v_and_b32 v{T+2}, 15, v{LANE}")
    A(f"v_lshlrev_b32 v{T+3}, 10, v{T}")
    A(f"v_lshl_add_u32 v{T+3}, v{T+1}, 8, v{T+3}")
    A(f"v_lshl_add_u32 v{T+3}, v{T+2}, 4, v{T+3}")
    A(f"v_lshrrev_b32 v{T+4}, 2, v{T+2}")
    A(f"v_lshlrev_b32 v{T+4}, 3, v{T+4}")
    A(f"v_lshl_add_u32 v{T+4}, v{T}, 2, v{T+4}")
    A(f"v_and_b32 v{T+5}, 3, v{LANE}")
    A(f"v_add_u32 v{T+4}, v{T+4}, v{T+5}")
    A(f"v_lshlrev_b32 v{T+4}, 2, v{T+4}")
    A(f"s_lshl_b32 s{sT+4}, s{sQb}, 3")
    A(f"s_lshl_b32 s{sT+5}, s{sW}, 1")
    A(f"s_add_u32 s{sT+4}, s{sT+4}, s{sT+5}")
    A(f"s_lshl_b32 s{sT+5}, s{sT+4}, 11")
    A(f"s_add_u32 s{sT+5}, s{sT+5}, s{sT+3}")
    A(f"s_lshl_b32 s{sT+6}, s{sT+4}, 7")
    A(f"s_add_u32 s{sT+6}, s{sT+6}, {WS_GATE}")
    A("s_waitcnt lgkmcnt(0)")
    A(f"s_mov_b32 s{S_WS+2}, {WS_SIZE}")
    A(f"s_mov_b32 s{S_WS+3}, 0x00020000")
    for S, off in ((S_K, WS_KF), (S_V, WS_VF)):
        A(f"s_add_u32 s{S}, s{S_WS}, s{sT+3}")
        A(f"s_addc_u32 s{S+1}, s{S_WS+1}, 0")
        A(f"s_add_u32 s{S}, s{S}, {off}")
        A(f"s_addc_u32 s{S+1}, s{S+1}, 0")
        A(f"s_mov_b32 s{S+2}, 131072")
        A(f"s_mov_b32 s{S+3}, 0x00020000")
    def dma(slot_s):
        return [f"s_add_u32 m0, s{slot_s}, s{sT+7}",
                f"buffer_load_dwordx4 v{L16}, s[{S_K}:{S_K+3}], s{sOff} offen lds",
                f"buffer_load_dwordx4 v{L16}, s[{S_K}:{S_K+3}], s{sOff} offen offset:1024 lds",
                f"s_add_u32 m0, s{slot_s}, s{sT+8}",
                f"buffer_load_dwordx4 v{L16}, s[{S_V}:{S_V+3}], s{sOff} offen lds",
                f"buffer_load_dwordx4 v{L16}, s[{S_V}:{S_V+3}], s{sOff} offen offset:1024 lds",
                f"s_add_u32 s{sOff}, s{sOff}, 8192"]
    A(f"s_lshl_b32 s{sT+7}, s{sW}, 11")
    A(f"s_add_u32 s{sT+8}, s{sT+7}, 8192")
    def emit(lst):
        for x in lst:
            A(x)
            if x.startswith("s_add_u32 m0"): A("s_nop 0")
    emit(dma(sSl[0]))
    for X in range(2):
        for m in range(2):
            A(f"buffer_load_dwordx4 {vr(QF_(X,m),4)}, v{T+3}, s[{S_WS}:{S_WS+3}], s{sT+5} offen offset:{X*2048+m*512}")
    for X in range(2):
        A(f"buffer_load_dword v{GV[X]}, v{T+4}, s[{S_WS}:{S_WS+3}], s{sT+6} offen offset:{X*128}")
    emit(dma(sSl[1]))
    emit(dma(sSl[2]))
    A(f"v_bfe_u32 v{T+5}, v{LANE}, 3, 1")
    A(f"v_lshlrev_b32 v{AL}, 10, v{T+5}")
    A(f"v_lshl_add_u32 v{AL}, v{T+1}, 8, v{AL}")
    A(f"v_lshl_add_u32 v{AL}, v{T}, 7, v{AL}")
    A(f"v_and_b32 v{T+5}, 7, v{LANE}")
    A(f"v_lshl_add_u32 v{AL}, v{T+5}, 4, v{AL}")
    A(f"v_mov_b32 v{AR}, v{AL}")
    A(f"v_and_b32 v{T+5}, 1, v{LANE}")
    A(f"v_cmp_eq_u32 vcc, v{T+5}, v{T}")
    A(f"v_mov_b32 v{T+6}, 0x3f803f80")
    A.nop(1)
    for k in range(4): A(f"v_cndmask_b32 v{ONES+k}, 0, v{T+6}, vcc")
    for r in list(range(32, 64)) + list(range(96, 112)) + list(range(144, 168)):
        A(f"v_mov_b32 v{r}, 0")
    def rdK(buf, tile): return [f"ds_read_b128 {vr(KB(buf,m),4)}, v{AR} offset:{tile*2048+m*512}" for m in range(2)]
    def rdV(buf, tile): return [f"ds_read_b128 {vr(VB(buf,m),4)}, v{AR} offset:{8192+tile*2048+m*512}" for m in range(2)]
    A("s_waitcnt vmcnt(8)")
    A("s_barrier")
    for x in rdK(0, 0) + rdV(0, 0): A(x)
    A("s_waitcnt lgkmcnt(0)")
    for X in range(2):
        A(mf32(S_[X], KB(0, 0), QF_(X, 0), "0"))
        A(mf32(S_[X], KB(0, 1), QF_(X, 1), vr(S_[X], 16)))
    A.nop(16)
    for X in range(2):
        s = S_[X]
        t = T + 8 + X
        A(f"v_max3_f32 v{t}, v{s}, v{s+1}, v{s+2}")
        for k in range(3, 15, 2):
            A(f"v_max3_f32 v{t}, v{t}, v{s+k}, v{s+k+1}")
        A(f"v_max_f32 v{t}, v{t}, v{s+15}")
        A(f"v_mov_b32 v{t+2}, v{t}")
    A.nop(2)
    for X in range(2): A(f"v_permlane32_swap_b32 v{T+8+X}, v{T+10+X}")
    A.nop(2)
    for X in range(2):
        A(f"v_max_f32 v{T+8+X}, v{T+8+X}, v{T+10+X}")
    for X in range(2):
        for k in range(16): A(f"v_sub_f32 v{CI[X]+k}, 0, v{T+8+X}")
    A.nop(2)
    A(mf32(S_[0], KB(0, 0), QF_(0, 0), vr(CI[0], 16)))
    A(mf32(S_[0], KB(0, 1), QF_(0, 1), vr(S_[0], 16)))
    A(f"s_mov_b32 s{sCnt}, 16")
    A(f"s_sub_u32 s{sOff}, s{sOff}, 8192")
    A(f"s_mov_b32 s{sSl[0]}, 32768")
    A(f"s_mov_b32 s{sSl[1]}, 0")
    A(f"s_mov_b32 s{sSl[2]}, 16384")
    A.nop(12)
    stamp(A, 1)
    A.raw(".p2align 6")
    A.label(f"{name}_aloop")
    D = dma(sSl[0])
    exs = {0: [D[6], f"s_mov_b32 s{sT}, s{sSl[0]}", f"s_mov_b32 s{sSl[0]}, s{sSl[1]}"],
           1: [f"s_mov_b32 s{sSl[1]}, s{sSl[2]}", f"s_mov_b32 s{sSl[2]}, s{sT}", f"s_sub_u32 s{sCnt}, s{sCnt}, 1"],
           6: D[0:3], 7: D[3:6]}
    for n in range(8):
        X = n & 1; Y = X ^ 1
        t = n >> 1
        kq = ((n + 1) >> 1) & 1
        vq = ((n - 1) >> 1) & 1
        if X == 0: rd = rdK((t + 1) & 1, (t + 1) & 3)
        else: rd = rdV((t + 1) & 1, (t + 1) & 3)
        ex = [[x] for x in exs.get(n, [])] + [[], [], []]
        if n == 5: W = ["s_waitcnt vmcnt(4) lgkmcnt(0)", "s_barrier", f"v_add_u32 v{AR}, s{sSl[1]}, v{AL}"]
        elif n == 7: W = ["s_waitcnt lgkmcnt(0)", f"s_cmp_lg_u32 s{sCnt}, 0"]
        else: W = ["s_waitcnt lgkmcnt(0)"]
        E = [f"v_exp_f32 v{S_[X]+k}, v{S_[X]+k}" for k in range(16)]
        C = [f"v_cvt_pk_bf16_f32 v{P_[X]+k}, v{S_[X]+2*k}, v{S_[X]+2*k+1}" for k in range(8)]
        M = [mf32(S_[Y], KB(kq, 0), QF_(Y, 0), vr(CI[Y], 16)),
             mf32(S_[Y], KB(kq, 1), QF_(Y, 1), vr(S_[Y], 16)),
             mf32(O_[Y], VB(vq, 0), P_[Y], vr(O_[Y], 16)),
             mf32(O_[Y], VB(vq, 1), P_[Y] + 4, vr(O_[Y], 16)),
             mf16(L_[Y], ONES, P_[Y]),
             mf16(L_[Y], ONES, P_[Y] + 4)]
        seq = [M[0], rd[0], E[0], E[1], E[2],
               M[1], rd[1], E[3], E[4], C[0], E[5],
               M[2]] + ex[0] + [E[6], C[1], E[7], E[8], C[2],
               M[3]] + ex[1] + [E[9], E[10], C[3], E[11],
               M[4]] + ex[2] + [E[12], C[4], E[13],
               M[5]] + W + [E[14], C[5], E[15], C[6], C[7]]
        for x in seq: A(x)
    A(f"s_cbranch_scc1 {name}_aloop")
    stamp(A, 2)
    A.nop(2)
    A(mf32(O_[1], VB(1, 0), P_[1], vr(O_[1], 16)))
    A(mf32(O_[1], VB(1, 1), P_[1] + 4, vr(O_[1], 16)))
    A(mf16(L_[1], ONES, P_[1]))
    A(mf16(L_[1], ONES, P_[1] + 4))
    A(f"s_lshl_b32 s{sT}, s{sQb}, 1")
    A(f"s_lshr_b32 s{sT+1}, s{sW}, 1")
    A(f"s_add_u32 s{sT}, s{sT}, s{sT+1}")
    A(f"s_mul_i32 s{sT}, s{sT}, 88")
    A(f"s_add_u32 s{sT}, s{sT}, s{sHead}")
    A(f"s_lshl_b32 s{sT}, s{sT}, 13")
    A(f"s_and_b32 s{sT+1}, s{sW}, 1")
    A(f"s_lshl_b32 s{sT+1}, s{sT+1}, 12")
    A(f"s_add_u32 s{sT}, s{sT}, s{sT+1}")
    A(f"s_add_u32 s{sT}, s{sT}, {WS_AF}")
    A(f"v_cmp_eq_u32 vcc, 1, v{T}")
    A.nop(12)
    for X in range(2):
        A(f"v_cndmask_b32 v{T+8+X}, v{L_[X]}, v{L_[X]+1}, vcc")
    for X in range(2):
        A(f"v_rcp_f32 v{T+10+X}, v{T+8+X}")
    A.nop(1)
    for X in range(2):
        A(f"v_mul_f32 v{T+10+X}, v{T+10+X}, v{GV[X]}")
    for X in range(2):
        for k in range(16): A(f"v_mul_f32 v{O_[X]+k}, v{O_[X]+k}, v{T+10+X}")
        for k in range(8): A(f"v_cvt_pk_bf16_f32 v{P_[X]+k}, v{O_[X]+2*k}, v{O_[X]+2*k+1}")
        for c in range(2):
            A(f"buffer_store_dwordx4 {vr(P_[X]+4*c,4)}, v{T+3}, s[{S_WS}:{S_WS+3}], s{sT} offen offset:{X*2048+c*512}")
    stamp(A, 3)
    stamp_flush(A, 5, S_WS, 2, T + 12)
    A("s_endpgm")

def gen_k2(A, name):
    kernel_begin(A, name)
    A(f"s_cmp_ge_u32 s2, {K2_GRID}")
    A(f"s_cbranch_scc1 {name}_end")
    A("s_cmp_ge_u32 s2, 256")
    A(f"s_cbranch_scc1 {name}_sp")
    gen_attn(A, name)
    A.raw(".p2align 6")
    A.label(f"{name}_sp")
    try:
        from k2s import gen_spatial
        gen_spatial(A, name)
    except ImportError:
        pass
    A.label(f"{name}_end")
    A("s_endpgm")
    return kernel_desc(name, 256, 256)
```

```python
from asmlib import *
import k2
NS = k2.NS_SP
def acc(fi, ti): return (fi * 4 + ti) * 4
def af(st, fi): return 64 + st * 32 + fi * 4
def bf(st, ti): return 64 + st * 32 + 16 + ti * 4
Z1R = 128
BV = 160
GVv = 164
XV = 168
XL = 172
ZL = 174
XRa, ZRa, XRb, ZRb = 175, 176, 177, 178
L16, LANE = 179, 180
T = 182
S_WSP, S_Z, S_WS, S_B = 4, 8, 12, 16
sW, sTb, sFb, sX, sZ, sCnt, sRd, sDm = 20, 21, 22, 23, 24, 25, 26, 27
sT = 30

def gen_spatial(A, name):
    stamp(A, 0)
    fins = [srd(A, S_WSP, KA_WSP, 2048 * 4096), srd(A, S_WS, KA_WS, WS_SIZE), srd(A, S_B, KA_BSP, 4096)]
    A(f"v_and_b32 v{LANE}, 63, v0")
    A(f"v_lshrrev_b32 v{T}, 6, v0")
    A(f"s_and_b32 s{sT}, s2, 7")
    A(f"v_readfirstlane_b32 s{sW}, v{T}")
    A(f"s_sub_u32 s{sT+1}, s2, 256")
    A(f"s_lshr_b32 s{sT+1}, s{sT+1}, 3")
    A(f"s_lshr_b32 s{sTb}, s{sT}, 1")
    A(f"s_lshl_b32 s{sTb}, s{sTb}, 2")
    A(f"s_and_b32 s{sT+2}, s{sT+1}, 3")
    A(f"s_add_u32 s{sTb}, s{sTb}, s{sT+2}")
    A(f"s_and_b32 s{sFb}, s{sT}, 1")
    A(f"s_mul_i32 s{sFb}, s{sFb}, 7")
    A(f"s_lshr_b32 s{sT+2}, s{sT+1}, 2")
    A(f"s_add_u32 s{sFb}, s{sFb}, s{sT+2}")
    A(f"s_mov_b32 s79, s{sW}")
    A(f"v_lshlrev_b32 v{L16}, 4, v{LANE}")
    A(f"s_lshl_b32 s{sT}, s{sTb}, 7")
    A(f"s_lshl_b32 s{sT+1}, s{sW}, 5")
    A(f"s_add_u32 s{sT}, s{sT}, s{sT+1}")
    A(f"v_lshrrev_b32 v{T}, 3, v{LANE}")
    A(f"v_add_u32 v{T+1}, s{sT}, v{T}")
    A(f"v_lshlrev_b32 v{T+1}, 12, v{T+1}")
    A(f"v_bfe_u32 v{T+2}, v{LANE}, 4, 1")
    A(f"v_and_b32 v{T+3}, 7, v{LANE}")
    A(f"v_xor_b32 v{T+3}, v{T+3}, v{T+2}")
    for n in range(4):
        fx = ((n & 1) << 1) | (((n >> 1) & 1) << 2)
        A(f"v_xor_b32 v{T+4}, {fx}, v{T+3}")
        A(f"v_lshlrev_b32 v{T+4}, 4, v{T+4}")
        A(f"v_add_u32 v{T+4}, v{T+4}, v{T+1}")
        A(f"v_add_u32 v{XV+n}, {n * 8 * 4096 - n * 1024}, v{T+4}")
    A(f"s_lshr_b32 s{sT}, s{sW}, 1")
    A(f"s_mul_i32 s{sZ}, s{sT}, {112*1024}")
    A(f"s_lshl_b32 s{sT+1}, s{sFb}, 13")
    A(f"s_add_u32 s{sZ}, s{sZ}, s{sT+1}")
    A(f"s_and_b32 s{sT+1}, s{sW}, 1")
    A(f"s_lshl_b32 s{sT+1}, s{sT+1}, 12")
    A(f"s_add_u32 s{sZ}, s{sZ}, s{sT+1}")
    A(f"s_mov_b32 s{sX}, 0")
    A(f"s_lshl_b32 s{sDm}, s{sW}, 12")
    A(f"s_lshl_b32 s{sT+2}, s{sFb}, 3")
    A(f"s_lshl_b32 s{sT+3}, s{sT}, 2")
    A(f"s_add_u32 s{sT+2}, s{sT+2}, s{sT+3}")
    A(f"s_lshl_b32 s{sT+4}, s{sT+2}, 16")
    A(f"s_lshl_b32 s{sT+5}, s{sTb}, 2")
    A(f"s_and_b32 s{sT+6}, s{sW}, 1")
    A(f"s_lshl_b32 s{sT+6}, s{sT+6}, 1")
    A(f"s_add_u32 s{sT+5}, s{sT+5}, s{sT+6}")
    A(f"s_lshl_b32 s{sT+6}, s{sT+5}, 10")
    A(f"s_add_u32 s{sT+4}, s{sT+4}, s{sT+6}")
    A(f"s_add_u32 s{sT+4}, s{sT+4}, {WS_Z1}")
    A(f"v_and_b32 v{T}, 15, v{LANE}")
    A(f"v_lshrrev_b32 v{T+1}, 2, v{T}")
    A(f"v_lshlrev_b32 v{T+1}, 3, v{T+1}")
    A(f"v_and_b32 v{T+2}, 3, v{T}")
    A(f"v_add_u32 v{T+1}, v{T+1}, v{T+2}")
    A(f"v_lshlrev_b32 v{T+5}, 1, v{T+1}")
    A(f"v_lshlrev_b32 v{T+6}, 2, v{T+1}")
    A(f"s_lshl_b32 s{sT+6}, s{sT+5}, 6")
    A(f"s_lshl_b32 s{sT+7}, s{sT+5}, 7")
    A(f"s_add_u32 s{sT+7}, s{sT+7}, {WS_GATE}")
    A("s_waitcnt lgkmcnt(0)")
    for f in fins: f()
    A(f"s_add_u32 s{S_Z}, s{S_WS}, {WS_Z2N}")
    A(f"s_addc_u32 s{S_Z+1}, s{S_WS+1}, 0")
    A(f"s_mov_b32 s{S_Z+2}, {64*112*1024}")
    A(f"s_mov_b32 s{S_Z+3}, 0x00020000")
    def rot(r):
        if NS & (NS - 1) == 0:
            return [f"s_add_u32 s{r}, s{r}, 32768", f"s_and_b32 s{r}, s{r}, {NS*32768-1}"]
        return [f"s_add_u32 s{r}, s{r}, 32768", f"s_cmp_ge_u32 s{r}, {NS*32768}", f"s_cselect_b32 s{sT+9}, {NS*32768}, 0", f"s_sub_u32 s{r}, s{r}, s{sT+9}"]
    def dma():
        out = [f"s_mov_b32 m0, s{sDm}"]
        for n in range(4): out.append(f"buffer_load_dwordx4 v{XV+n}, s[{S_WSP}:{S_WSP+3}], s{sX} offen offset:{n*1024} lds")
        out.append(f"s_add_u32 m0, s{sDm}, 16384")
        for n in range(4): out.append(f"buffer_load_dwordx4 v{L16}, s[{S_Z}:{S_Z+3}], s{sZ} offen offset:{n*1024} lds")
        out += [f"s_add_u32 s{sX}, s{sX}, 128", f"s_cmp_ge_u32 s{sX}, 4096", f"s_cselect_b32 s{sX}, 0x80000000, s{sX}", f"s_add_u32 s{sZ}, s{sZ}, {2*112*1024}"]
        out += rot(sDm)
        return out
    def emit(lst):
        for x in lst:
            A(x)
            if "m0," in x: A("s_nop 0")
    emit(dma())
    emit(dma())
    for fi in range(4):
        for p in range(2):
            A(f"s_add_u32 s{sT+8}, s{sT+4}, {fi*65536}")
            A(f"buffer_load_dwordx4 {vr(Z1R+(fi*2+p)*4,4)}, v{L16}, s[{S_WS}:{S_WS+3}], s{sT+8} offen offset:{p*1024}")
    for ti in range(4):
        A(f"buffer_load_ushort v{BV+ti}, v{T+5}, s[{S_B}:{S_B+3}], s{sT+6} offen offset:{(ti>>1)*64+(ti&1)*8}")
        A(f"buffer_load_dword v{GVv+ti}, v{T+6}, s[{S_WS}:{S_WS+3}], s{sT+7} offen offset:{(ti>>1)*128+(ti&1)*16}")
    for _ in range(NS - 3): emit(dma())
    emit(dma()[:5])
    A(f"v_lshlrev_b32 v{T+1}, 7, v{T+1}")
    A(f"v_lshrrev_b32 v{T+2}, 1, v{T}")
    A(f"v_lshrrev_b32 v{T+3}, 4, v{LANE}")
    A(f"v_xor_b32 v{T+3}, v{T+3}, v{T+2}")
    A(f"v_lshl_add_u32 v{XL}, v{T+3}, 4, v{T+1}")
    A(f"s_and_b32 s{sT+8}, s{sW}, 1")
    A(f"s_lshl_b32 s{sT+8}, s{sT+8}, 13")
    A(f"v_add_u32 v{XL}, s{sT+8}, v{XL}")
    A(f"v_xor_b32 v{XL+1}, 64, v{XL}")
    A(f"s_lshr_b32 s{sT+8}, s{sW}, 1")
    A(f"s_lshl_b32 s{sT+8}, s{sT+8}, 12")
    A(f"s_add_u32 s{sT+8}, s{sT+8}, 16384")
    A(f"v_add_u32 v{ZL}, s{sT+8}, v{L16}")
    for r in range(64): A(f"v_mov_b32 v{r}, 0")
    def reads(st, kk):
        XR, ZR = (XRa, ZRa) if kk == 0 else (XRb, ZRb)
        out = []
        for i in range(4):
            out.append(f"ds_read_b128 {vr(af(st,i),4)}, v{ZR} offset:{kk*8192+i*1024}")
            out.append(f"ds_read_b128 {vr(bf(st,i),4)}, v{XR} offset:{(i>>1)*4096+(i&1)*512}")
        return out
    def mfmas(st):
        return [f"v_mfma_f32_16x16x32_bf16 {vr(acc(fi,ti),4)}, {vr(af(st,fi),4)}, {vr(bf(st,ti),4)}, {vr(acc(fi,ti),4)}" for fi in range(4) for ti in range(4)]
    A(f"s_mov_b32 s{sRd}, 0")
    A(f"v_mov_b32 v{XRa}, v{XL}")
    A(f"v_mov_b32 v{ZRa}, v{ZL}")
    A(f"v_mov_b32 v{XRb}, v{XL+1}")
    A(f"v_mov_b32 v{ZRb}, v{ZL}")
    A(f"s_waitcnt vmcnt({8*(NS-2)+20})")
    A("s_barrier")
    for x in reads(0, 0): A(x)
    A(f"s_mov_b32 s{sCnt}, 32")
    A("s_waitcnt lgkmcnt(0)")
    stamp(A, 1)
    A.raw(".p2align 6")
    A.label(f"{name}_sloop")
    D = dma()
    DB, DA = D[:5], D[5:]
    def merge(m, oth):
        assert len(oth) <= len(m), len(oth)
        for k in range(len(m)):
            A(m[k])
            if k < len(oth):
                for x in (oth[k] if isinstance(oth[k], list) else [oth[k]]): A(x)
    rd = reads(1, 1)
    R = rot(sRd)
    seqA = [rd[0], rd[1], [DA[0]] + R[:2], rd[2], DA[1], rd[3], rd[4], DA[2], rd[5], rd[6], DA[3], rd[7], DA[4],
            R[2:] + [f"v_add_u32 v{XRa}, s{sRd}, v{XL}"], [f"v_add_u32 v{ZRa}, s{sRd}, v{ZL}"], DA[5:8]]
    merge(mfmas(0), seqA)
    A(f"s_waitcnt vmcnt({8*(NS-2)}) lgkmcnt(0)")
    A("s_barrier")
    rd = reads(0, 0)
    seqB = [rd[0], rd[1], DA[8:], rd[2], DB[0], rd[3], rd[4], DB[1], rd[5], rd[6], DB[2], rd[7], DB[3],
            [f"v_add_u32 v{XRb}, s{sRd}, v{XL+1}", f"s_sub_u32 s{sCnt}, s{sCnt}, 1"], DB[4], [f"v_add_u32 v{ZRb}, s{sRd}, v{ZL}", f"s_cmp_lg_u32 s{sCnt}, 0"]]
    merge(mfmas(1), seqB)
    A("s_waitcnt lgkmcnt(0)")
    A(f"s_cbranch_scc1 {name}_sloop")
    stamp(A, 2)
    A("s_waitcnt vmcnt(0)")
    A(f"s_mul_i32 s{sT}, s{sTb}, 88")
    A(f"s_lshr_b32 s{sT+1}, s{sT+2}, 1")
    A(f"s_add_u32 s{sT}, s{sT}, s{sT+1}")
    A(f"s_add_u32 s{sT}, s{sT}, 32")
    A(f"s_lshl_b32 s{sT}, s{sT}, 13")
    A(f"s_and_b32 s{sT+1}, s{sW}, 1")
    A(f"s_lshl_b32 s{sT+1}, s{sT+1}, 12")
    A(f"s_add_u32 s{sT}, s{sT}, s{sT+1}")
    A(f"s_add_u32 s{sT}, s{sT}, {WS_AF}")
    A(f"s_add_u32 s{sT+1}, s{sT}, 8192")
    for ti in range(4):
        A(f"v_sub_f32 v{GVv+ti}, 1.0, v{GVv+ti}")
        A(f"v_lshlrev_b32 v{BV+ti}, 16, v{BV+ti}")
        A(f"v_mul_f32 v{BV+ti}, v{BV+ti}, v{GVv+ti}")
    tsel = 0
    for ph in range(2):
        for ti in range(4):
            t = 64 + 4 * (tsel % 4); tsel += 1
            for half, fi in enumerate((2 * ph, 2 * ph + 1)):
                z = Z1R + (fi * 2 + (ti >> 1)) * 4 + (ti & 1) * 2
                a = acc(fi, ti)
                for r in range(4): A(f"v_fma_f32 v{a+r}, v{a+r}, v{GVv+ti}, v{BV+ti}")
                A(f"v_lshlrev_b32 v{T}, 16, v{z}")
                A(f"v_and_b32 v{T+1}, 0xffff0000, v{z}")
                A(f"v_lshlrev_b32 v{T+2}, 16, v{z+1}")
                A(f"v_and_b32 v{T+3}, 0xffff0000, v{z+1}")
                for r in range(4): A(f"v_mul_f32 v{a+r}, v{a+r}, v{T+r}")
                A(f"v_cvt_pk_bf16_f32 v{t+2*half}, v{a}, v{a+1}")
                A(f"v_cvt_pk_bf16_f32 v{t+2*half+1}, v{a+2}, v{a+3}")
            A(f"buffer_store_dwordx4 {vr(t,4)}, v{L16}, s[{S_WS}:{S_WS+3}], s{sT+ph} offen offset:{ti*1024}")
    stamp(A, 3)
    stamp_flush(A, 5, S_WS, 2, T + 4)
    A("s_endpgm")
```

```python
from asmlib import *
DEP = 4
WSL = 4
K3_LDS = 98304
def acc(ti, nb): return (ti * 4 + nb) * 4
def aset(st, ti): return st * 32 + ti * 4
def wfr(st, nb): return 128 + st * 16 + nb * 4
WV = 160
WR = 164
L16, LANE = 168, 169
T = 170
S_A, S_W, S_O, S_W2, S_WS = 4, 8, 12, 16, 20
sW, sTb, sNb, sA, sWo, sCnt, sM = 24, 25, 26, 27, 28, 29, 30
sT = 32

def gen_k3(A, name):
    kernel_begin(A, name)
    A("s_cmp_ge_u32 s2, 256")
    A(f"s_cbranch_scc1 {name}_end")
    stamp(A, 0)
    fins = [srd(A, S_W, KA_WO, 1024 * 2048), srd(A, S_W2, KA_WOUT, 1792 * 2048), srd(A, S_O, KA_OUT, 2048 * 2048), srd(A, S_WS, KA_WS, WS_SIZE)]
    A(f"v_and_b32 v{LANE}, 63, v0")
    A(f"v_lshrrev_b32 v{T}, 6, v0")
    A(f"s_and_b32 s{sT}, s2, 7")
    A(f"v_readfirstlane_b32 s{sW}, v{T}")
    A(f"s_lshr_b32 s{sT+1}, s2, 3")
    A(f"s_lshr_b32 s{sTb}, s{sT}, 1")
    A(f"s_lshl_b32 s{sTb}, s{sTb}, 2")
    A(f"s_and_b32 s{sT+2}, s{sT+1}, 3")
    A(f"s_add_u32 s{sTb}, s{sTb}, s{sT+2}")
    A(f"s_and_b32 s{sNb}, s{sT}, 1")
    A(f"s_lshl_b32 s{sNb}, s{sNb}, 3")
    A(f"s_lshr_b32 s{sT+2}, s{sT+1}, 2")
    A(f"s_add_u32 s{sNb}, s{sNb}, s{sT+2}")
    A(f"s_mov_b32 s79, s{sW}")
    A(f"v_lshlrev_b32 v{L16}, 4, v{LANE}")
    A(f"v_lshrrev_b32 v{T}, 3, v{LANE}")
    A(f"v_lshlrev_b32 v{T}, 11, v{T}")
    A(f"v_bfe_u32 v{T+1}, v{LANE}, 1, 2")
    A(f"v_lshrrev_b32 v{T+2}, 4, v{LANE}")
    A(f"v_xor_b32 v{T+1}, v{T+1}, v{T+2}")
    A(f"v_lshl_add_u32 v{T}, v{T+1}, 5, v{T}")
    A(f"v_and_b32 v{T+1}, 1, v{LANE}")
    A(f"v_lshl_add_u32 v{T}, v{T+1}, 4, v{T}")
    A(f"s_lshl_b32 s{sT}, s{sNb}, 7")
    A(f"v_add_u32 v{WV}, s{sT}, v{T}")
    for n in range(1, 4):
        A(f"v_add_u32 v{WV+n}, {n*8*2048 - n*1024}, v{WV}")
    A(f"s_lshl_b32 s{sA}, s{sW}, 13")
    A(f"s_lshl_b32 s{sWo}, s{sW}, 16")
    A(f"s_mul_i32 s{sM}, s{sW}, {WSL*4096}")
    A(f"s_mul_i32 s{sT+1}, s{sTb}, {88*8192}")
    A(f"s_add_u32 s{sT+1}, s{sT+1}, {WS_AF}")
    A("s_waitcnt lgkmcnt(0)")
    for f in fins: f()
    A(f"s_add_u32 s{S_A}, s{S_WS}, s{sT+1}")
    A(f"s_addc_u32 s{S_A+1}, s{S_WS+1}, 0")
    A(f"s_mov_b32 s{S_A+2}, {88*8192}")
    A(f"s_mov_b32 s{S_A+3}, 0x00020000")
    def dmaw(slot):
        out = [f"s_add_u32 m0, s{sM}, {slot*4096}"]
        for n in range(4): out.append(f"buffer_load_dwordx4 v{WV+n}, s[{S_W}:{S_W+3}], s{sWo} offen offset:{n*1024} lds")
        return out
    def advw():
        return [f"s_add_u32 s{sWo}, s{sWo}, {4*65536}"]
    def switchw():
        return [f"s_mov_b32 s{S_W}, s{S_W2}", f"s_mov_b32 s{S_W+1}, s{S_W2+1}", f"s_mov_b32 s{S_W+2}, s{S_W2+2}", f"s_sub_u32 s{sWo}, s{sWo}, {32*65536}"]
    def lda(st, ti):
        return f"buffer_load_dwordx4 {ar(aset(st,ti),4)}, v{L16}, s[{S_A}:{S_A+3}], s{sA if ti < 4 else sA+20} offen offset:{(ti&3)*1024}"
    def adva(): return [f"s_add_u32 s{sA}, s{sA}, 32768", f"s_add_u32 s{sA+20}, s{sA+20}, 32768"]
    A(f"s_add_u32 s{sA+20}, s{sA}, 4096")
    for st in range(DEP):
        for x in dmaw(st):
            A(x)
            if "m0," in x: A("s_nop 0")
        for x in advw(): A(x)
        for ti in range(8): A(lda(st, ti))
        for x in adva(): A(x)
    A(f"v_lshrrev_b32 v{T}, 2, v{LANE}")
    A(f"v_bfe_u32 v{T+1}, v{LANE}, 3, 2")
    A(f"v_lshlrev_b32 v{T}, 7, v{T}")
    A(f"v_and_b32 v{T+2}, 3, v{LANE}")
    A(f"v_lshl_add_u32 v{T}, v{T+2}, 3, v{T}")
    A(f"v_add_u32 v{T}, s{sM}, v{T}")
    for b in range(4):
        A(f"v_xor_b32 v{T+2}, {b}, v{T+1}")
        A(f"v_lshl_add_u32 v{WR+b}, v{T+2}, 5, v{T}")
    for r in range(128): A(f"v_mov_b32 v{r}, 0")
    def rdw(st, slot):
        return [f"ds_read_b64_tr_b16 {vr(wfr(st,b)+2*t,2)}, v{WR+b} offset:{slot*4096+t*2048}" for b in range(4) for t in range(2)]
    A(f"s_waitcnt vmcnt({12*DEP-4})")
    for x in rdw(0, 0): A(x)
    A(f"s_mov_b32 s{sCnt}, 5")
    stamp(A, 1)
    def step(q, pf, extra=[], nwait=None, rd=True):
        st = q % DEP
        if nwait is None: nwait = 8 + 12 * (DEP - 2)
        A(f"s_waitcnt vmcnt({nwait}) lgkmcnt(0)")
        M = [f"v_mfma_f32_16x16x32_bf16 {vr(acc(ti,nb),4)}, {vr(wfr(q&1,nb),4)}, {ar(aset(st,ti),4)}, {vr(acc(ti,nb),4)}" for ti in range(8) for nb in range(4)]
        gaps = [[] for _ in range(32)]
        if rd:
            for k, x in enumerate(rdw((q + 1) & 1, (q + 1) % WSL)): gaps[1 + 2 * k if k < 4 else 2 + 2 * k].append(x)
        if pf:
            for k, x in enumerate(dmaw(q % WSL)): gaps[2 * k].append(x)
            gaps[9] += advw()
            pos = [11, 13, 15, 17, 20, 24, 28, 31]
            for ti in range(8):
                assert pos[ti] >= 4 * ti + 3
                gaps[pos[ti]].append(lda(st, ti))
        for k, x in enumerate(extra): gaps[19 + k * 2].append(x)
        for k in range(32):
            A(M[k])
            for x in gaps[k]: A(x)
        if pf:
            for x in adva(): A(x)
    A.raw(".p2align 6")
    A.label(f"{name}_loop")
    lab = f"{name}_nosw"
    for q in range(4):
        step(q, True, extra=[f"s_sub_u32 s{sCnt}, s{sCnt}, 1"] if q == 3 else [])
    A(f"s_cmp_lg_u32 s{sCnt}, 4")
    A(f"s_cbranch_scc1 {lab}")
    for x in switchw(): A(x)
    A.label(lab)
    A(f"s_cmp_lg_u32 s{sCnt}, 0")
    A(f"s_cbranch_scc1 {name}_loop")
    step(0, False, nwait=8 + 12 * (DEP - 2))
    step(1, False, nwait=12 * (DEP - 2), rd=False)
    stamp(A, 2)
    A.nop(8)
    A("s_waitcnt vmcnt(0)")
    A("s_barrier")
    for w in range(4):
        A(f"s_cmp_lg_u32 s{sW}, {w}")
        A(f"s_cbranch_scc1 {name}_red{w}")
        for d in range(4):
            if d == w: continue
            kk = (w - d - 1) & 3
            A(f"v_add_u32 v{T}, {d*24576 + kk*8192}, v{L16}")
            for e in range(2):
                for nb in range(4):
                    A(f"ds_write_b128 v{T}, {vr(acc(2*d+e,nb),4)} offset:{(e*4+nb)*1024}")
        A("s_waitcnt lgkmcnt(0)")
        A("s_barrier")
        A(f"v_add_u32 v{T}, {w*24576}, v{L16}")
        oth = [r for r in range(0, 128, 4) if not (acc(2*w,0) <= r < acc(2*w,0) + 32)]
        for k in range(24):
            A(f"ds_read_b128 {vr(oth[k],4)}, v{T} offset:{k*1024}")
        for kk in range(3):
            A(f"s_waitcnt lgkmcnt({min(15, 16 - 8*kk) if kk < 2 else 0})")
            for i in range(8):
                a = acc(2*w,0) + 4 * i
                for h in range(2):
                    A(f"v_pk_add_f32 {vr(a+2*h,2)}, {vr(a+2*h,2)}, {vr(oth[kk*8+i]+2*h,2)}")
        for i in range(8):
            a = acc(2*w,0) + 4 * i
            A(f"v_cvt_pk_bf16_f32 v{128+2*i}, v{a}, v{a+1}")
            A(f"v_cvt_pk_bf16_f32 v{128+2*i+1}, v{a+2}, v{a+3}")
        A(f"s_branch {name}_out")
        A.label(f"{name}_red{w}")
    A("s_endpgm")
    A.label(f"{name}_out")
    A(f"v_and_b32 v{T}, 15, v{LANE}")
    A(f"v_lshrrev_b32 v{T+1}, 2, v{T}")
    A(f"v_lshlrev_b32 v{T+1}, 3, v{T+1}")
    A(f"v_and_b32 v{T}, 3, v{T}")
    A(f"v_add_u32 v{T}, v{T}, v{T+1}")
    A(f"v_lshlrev_b32 v{T}, 11, v{T}")
    A(f"v_lshrrev_b32 v{T+1}, 4, v{LANE}")
    A(f"v_lshl_add_u32 v{T}, v{T+1}, 3, v{T}")
    A(f"s_lshl_b32 s{sT}, s{sTb}, 2")
    A(f"s_add_u32 s{sT}, s{sT}, s{sW}")
    A(f"s_lshl_b32 s{sT}, s{sT}, 16")
    A(f"s_lshl_b32 s{sT+1}, s{sNb}, 7")
    A(f"s_add_u32 s{sT}, s{sT}, s{sT+1}")
    A(f"s_add_u32 s{sT+1}, s{sT}, 8192")
    for e in range(2):
        for nb in range(4):
            i = e * 4 + nb
            A(f"buffer_store_dwordx2 {vr(128+2*i,2)}, v{T}, s[{S_O}:{S_O+3}], s{sT+e} offen offset:{nb*32}")
    stamp(A, 3)
    stamp_flush(A, 5, S_WS, 3, T + 4)
    A.label(f"{name}_end")
    A("s_endpgm")
    return kernel_desc(name, 320, 192)
```

```python
import sys
from asmlib import *
from k1 import gen_k1
from k1b import gen_k1b

HEAD = open("gated_mix__mha_block__mixer_gmlp__prompt.s.ref").read().split("; Override launch geometry")[0]

def build(kernels):
    A = Asm()
    hdr = HEAD
    descs = []
    for name, fn, grid, block, lds in kernels:
        hdr += f"; @launch kernel={name} grid=({grid},1,1) block=({block},1,1) lds={lds}\n"
    A.raw('.amdgcn_target "amdgcn-amd-amdhsa--gfx950"')
    A.raw(".text")
    for name, fn, grid, block, lds in kernels:
        descs.append(fn(A, name))
    A.raw('.section .rodata,"a"')
    out = hdr + A.text()
    for d in descs:
        out += ".p2align 6\n" + d
    return out

if __name__ == "__main__":
    ks = [("k1_kernel", gen_k1, 256, 256, 163840), ("k1b_kernel", gen_k1b, 256, 256, 1024)]
    try:
        from k2 import gen_k2, K2_GRID, K2_LDS
        ks.append(("k2_kernel", gen_k2, K2_GRID, 256, K2_LDS))
        from k3 import gen_k3, K3_LDS
        ks.append(("k3_kernel", gen_k3, 256, 256, K3_LDS))
    except ImportError as e:
        print("note:", e, file=sys.stderr)
    dst = sys.argv[1] if len(sys.argv) > 1 else "gated_mix__mha_block__mixer_gmlp__prompt.s"
    open(dst, "w").write(build(ks))
    print("wrote", dst)
```

```python
import struct

def f2u(x):
    return struct.unpack("<I", struct.pack("<f", x))[0]

class Asm:
    def __init__(self):
        self.lines = []
        self._lab = 0
    def __call__(self, s):
        for l in s.split("\n"):
            l = l.strip()
            if l:
                self.lines.append(l if l.endswith(":") else "  " + l)
    def label(self, name):
        self.lines.append(name + ":")
    def raw(self, s):
        self.lines.append(s)
    def newlabel(self, p="L"):
        self._lab += 1
        return f"{p}_{self._lab}"
    def comment(self, s):
        self.lines.append("  ; " + s)
    def nop(self, n):
        while n > 0:
            k = min(n, 16)
            self(f"s_nop {k-1}")
            n -= k
    def text(self):
        return "\n".join(self.lines) + "\n"

def vr(a, n=1):
    return f"v{a}" if n == 1 else f"v[{a}:{a+n-1}]"
def ar(a, n=1):
    return f"a{a}" if n == 1 else f"a[{a}:{a+n-1}]"
def sr(a, n=1):
    return f"s{a}" if n == 1 else f"s[{a}:{a+n-1}]"

def srd(A, d, karg_off, nbytes):
    A(f"s_load_dwordx2 s[{d}:{d+1}], s[0:1], {karg_off}")
    def fin():
        A(f"s_mov_b32 s{d+2}, {nbytes}")
        A(f"s_mov_b32 s{d+3}, 0x00020000")
    return fin

def kernel_begin(A, name):
    A.raw(f".globl {name}")
    A.raw(".p2align 8")
    A.raw(f".type {name},@function")
    A.label(name)

def kernel_desc(name, nvgpr, accum, nsgpr=102):
    return f""".amdhsa_kernel {name}
  .amdhsa_next_free_vgpr {nvgpr}
  .amdhsa_next_free_sgpr {nsgpr}
  .amdhsa_accum_offset {accum}
  .amdhsa_group_segment_fixed_size 0
  .amdhsa_kernarg_size 96
  .amdhsa_user_sgpr_count 2
  .amdhsa_user_sgpr_kernarg_segment_ptr 1
  .amdhsa_system_sgpr_workgroup_id_x 1
  .amdhsa_float_denorm_mode_32 3
.end_amdhsa_kernel
"""

def interleave(A, mfmas, others, first=0, last=None):
    n = len(mfmas)
    if last is None:
        last = n - 1
    gaps = [[] for _ in range(n)]
    span = last - first + 1
    for i, o in enumerate(others):
        gaps[first + (i * span) // max(len(others), 1)].append(o)
    for m, g in zip(mfmas, gaps):
        A(m)
        for o in g:
            A(o)

MB = 1 << 20
WS_QF = 0
WS_KF = 4 * MB
WS_VF = 8 * MB
WS_Z1 = 12 * MB
WS_Z2 = 20 * MB
WS_AF = 28 * MB
WS_STAT = 40 * MB
WS_GATE = 41 * MB
WS_Z2N = 44 * MB
WS_FLAG = 42 * MB
WS_SIZE = 64 * MB
KA_X, KA_WQKV, KA_WO, KA_BX, KA_WIN, KA_WSP, KA_BSP, KA_WOUT, KA_GATE, KA_OUT, KA_DBG, KA_WS = [8 * i for i in range(12)]

WS_DBG = 60 * MB
import os
PROF = os.environ.get("PROF", "0") == "1"
NSTAMP = 8
def stamp(A, idx, base=80):
    if not PROF: return
    A("s_memrealtime s[96:97]")
    A("s_memtime s[98:99]")
    A("s_waitcnt lgkmcnt(0)")
    A(f"s_mov_b32 s{base+2*idx}, s96")
    A(f"s_mov_b32 s{base+2*idx+1}, s98")
def stamp_flush(A, n, srd_ws, kidx, vt, base=80):
    if not PROF: return
    A("s_waitcnt vmcnt(0)")
    stamp(A, n - 1, base)
    A(f"s_lshl_b32 s{base-2}, s2, 2")
    A(f"s_add_u32 s{base-2}, s{base-2}, s{base-1}")
    A(f"s_lshl_b32 s{base-2}, s{base-2}, 7")
    A(f"s_add_u32 s{base-2}, s{base-2}, {WS_DBG + kidx * 0x40000}")
    A(f"v_mov_b32 v{vt}, 0")
    for i in range(2 * n):
        A(f"v_mov_b32 v{vt+1}, s{base+i}")
        A(f"buffer_store_dword v{vt+1}, v{vt}, s[{srd_ws}:{srd_ws+3}], s{base-2} offen offset:{4*i}")
    A(f"v_mov_b32 v{vt+1}, {n}")
    A(f"buffer_store_dword v{vt+1}, v{vt}, s[{srd_ws}:{srd_ws+3}], s{base-2} offen offset:124")
```

```python
from asmlib import *
import math

QSCALE = (32 ** -0.5) * math.log2(math.e)
GELU_A = -2.0 * math.sqrt(2.0 / math.pi) * math.log2(math.e)
GELU_B = GELU_A * 0.044715

WR = 208
XR = 221
XL = 223
XV = 225
WZV = 229
WQV = 231
L16 = 233
LANE = 234
GATEV = 235
T = 236
PFV = 252
sPF = 35
sPF2 = 62
def acc(b, i): return (b * 4 + i) * 4
def xf(st, i): return st * 16 + i * 4
def wf(st, b): return 32 + st * 52 + b * 4
WBASE = 98304

S_X, S_WZ, S_WQ, S_WS, S_G = 4, 8, 12, 16, 20
sW, sRB, sJ = 24, 25, 26
sX, sWZ, sWQ = 27, 28, 29
sA, sB, sC = 30, 31, 32
sWb = 33
sCnt = 34
sT = 36

def gelu_pairs(A, regs, tmp, sCa, sCb, sOne):
    pass

def gen_k1(A, name):
    kernel_begin(A, name)
    A("s_cmp_ge_u32 s2, 256")
    A(f"s_cbranch_scc1 {name}_end")
    stamp(A, 0)
    fins = [srd(A, S_X, KA_X, 2048 * 2048), srd(A, S_WZ, KA_WIN, 1024 * 7168), srd(A, S_WQ, KA_WQKV, 1024 * 6144),
            srd(A, S_WS, KA_WS, WS_SIZE), srd(A, S_G, KA_GATE, 2048)]
    A(f"v_and_b32 v{LANE}, 63, v0")
    A(f"v_lshrrev_b32 v{T}, 6, v0")
    A(f"s_and_b32 s{sT}, s2, 7")
    A(f"v_readfirstlane_b32 s{sW}, v{T}")
    A(f"s_lshr_b32 s{sT+1}, s2, 3")
    A(f"s_mov_b32 s79, s{sW}")
    A(f"s_and_b32 s{sRB}, s{sT}, 1")
    A(f"s_lshl_b32 s{sRB}, s{sRB}, 2")
    A(f"s_and_b32 s{sT+2}, s{sT+1}, 3")
    A(f"s_add_u32 s{sRB}, s{sRB}, s{sT+2}")
    A(f"s_lshr_b32 s{sJ}, s{sT}, 1")
    A(f"s_lshl_b32 s{sJ}, s{sJ}, 3")
    A(f"s_lshr_b32 s{sT+2}, s{sT+1}, 2")
    A(f"s_add_u32 s{sJ}, s{sJ}, s{sT+2}")
    A(f"v_lshlrev_b32 v{L16}, 4, v{LANE}")
    A(f"s_lshl_b32 s{sT}, s{sRB}, 8")
    A(f"s_lshl_b32 s{sT+1}, s{sW}, 6")
    A(f"s_add_u32 s{sT}, s{sT}, s{sT+1}")
    A(f"v_lshrrev_b32 v{T}, 3, v{LANE}")
    A(f"v_add_u32 v{T+1}, s{sT}, v{T}")
    A(f"v_lshlrev_b32 v{T+1}, 11, v{T+1}")
    A(f"v_lshrrev_b32 v{T+2}, 4, v{LANE}")
    A(f"v_and_b32 v{T+2}, 1, v{T+2}")
    A(f"v_and_b32 v{T+3}, 7, v{LANE}")
    A(f"v_xor_b32 v{T+3}, v{T+3}, v{T+2}")
    for n in range(4):
        fx = ((n & 1) << 1) | (((n >> 1) & 1) << 2)
        A(f"v_xor_b32 v{T+4}, {fx}, v{T+3}")
        A(f"v_lshlrev_b32 v{T+4}, 4, v{T+4}")
        A(f"v_add_u32 v{T+4}, v{T+4}, v{T+1}")
        A(f"v_add_u32 v{XV+n}, {n * 8 * 2048 - n * 1024}, v{T+4}")
    A(f"v_lshrrev_b32 v{T}, 4, v{LANE}")
    A(f"s_and_b32 s{sT}, s{sW}, 1")
    A(f"s_lshl_b32 s{sT}, s{sT}, 2")
    A(f"v_or_b32 v{T+1}, s{sT}, v{T}")
    A(f"v_bfe_u32 v{T+2}, v{LANE}, 1, 3")
    A(f"v_xor_b32 v{T+2}, v{T+2}, v{T+1}")
    A(f"v_and_b32 v{T+3}, 1, v{LANE}")
    A(f"v_lshlrev_b32 v{T+3}, 4, v{T+3}")
    A(f"v_lshl_add_u32 v{T+3}, v{T+2}, 5, v{T+3}")
    A(f"s_lshl_b32 s{sT}, s{sW}, 3")
    A(f"v_add_u32 v{T}, s{sT}, v{T}")
    A(f"s_mul_i32 s{sT+1}, s{sJ}, 224")
    A(f"s_and_b32 s{sT+2}, s{sJ}, 1")
    A(f"s_lshl_b32 s{sT+3}, s{sT+2}, 5")
    A(f"s_sub_u32 s{sT+1}, s{sT+1}, s{sT+3}")
    A(f"s_mov_b32 s{sT+4}, 7168")
    A(f"v_mul_lo_u32 v{T+4}, v{T}, s{sT+4}")
    A(f"v_add3_u32 v{WZV}, v{T+4}, v{T+3}, s{sT+1}")
    A(f"s_sub_u32 s{sT+3}, 1, s{sT+2}")
    A(f"s_mul_i32 s{sT+3}, s{sT+3}, 7")
    A(f"v_mov_b32 v{T+5}, 0x80000000")
    A(f"v_cmp_eq_u32 vcc, s{sT+3}, v{T+2}")
    A.nop(2)
    A(f"v_cndmask_b32 v{WZV}, v{WZV}, v{T+5}, vcc")
    A(f"v_add_u32 v{WZV+1}, {4 * 7168 - 1024}, v{WZV}")
    A(f"s_mul_i32 s{sT+1}, s{sJ}, 192")
    A(f"s_mov_b32 s{sT+4}, 6144")
    A(f"v_mul_lo_u32 v{T+4}, v{T}, s{sT+4}")
    A(f"v_add3_u32 v{WQV}, v{T+4}, v{T+3}, s{sT+1}")
    A(f"v_cmp_lt_u32 vcc, 5, v{T+2}")
    A.nop(2)
    A(f"v_cndmask_b32 v{WQV}, v{WQV}, v{T+5}, vcc")
    A(f"v_add_u32 v{WQV+1}, {4 * 6144 - 1024}, v{WQV}")
    A(f"s_lshl_b32 s{sA}, s{sW}, 13")
    A(f"s_add_u32 s{sB}, s{sA}, 32768")
    A(f"s_add_u32 s{sC}, s{sA}, 65536")
    A(f"s_lshl_b32 s{sWb}, s{sW}, 12")
    A(f"s_add_u32 s{sWb}, s{sWb}, {WBASE}")
    A(f"s_lshl_b32 s{sT+6}, s{sRB}, 8")
    A(f"s_lshl_b32 s{sT+7}, s{sJ}, 3")
    A(f"s_add_u32 s{sT+6}, s{sT+6}, s{sT+7}")
    A(f"s_lshl_b32 s{sT+7}, s{sW}, 1")
    A(f"s_add_u32 s{sT+6}, s{sT+6}, s{sT+7}")
    A(f"s_lshl_b32 s{sT+7}, s{sT+6}, 11")
    A(f"v_lshlrev_b32 v{T+6}, 5, v{LANE}")
    A(f"s_lshl_b32 s{sPF}, s2, 2")
    A(f"s_add_u32 s{sPF}, s{sPF}, s{sW}")
    A(f"s_mov_b32 s{sPF2}, s{sPF}")
    A(f"s_lshl_b32 s{sPF}, s{sPF}, 10")
    for q, c in enumerate((128 * 6144, 128 * 7168, 128 * 6144 + MB, 128 * 7168 + MB)):
        A(f"v_add_u32 v{PFV+q}, {c}, v{L16}")
    def pf(q):
        S = S_WQ if q % 2 == 0 else S_WZ
        return f"buffer_load_dwordx4 a[136:139], v{PFV+q}, s[{S}:{S+3}], s{sPF} offen"
    A("s_waitcnt lgkmcnt(0)")
    for f in fins: f()
    A(f"buffer_load_dwordx4 v[0:3], v{T+6}, s[{S_X}:{S_X+3}], s{sT+7} offen")
    A(f"buffer_load_dwordx4 v[4:7], v{T+6}, s[{S_X}:{S_X+3}], s{sT+7} offen offset:16")
    A(f"buffer_load_dwordx4 v[8:11], v{T+6}, s[{S_X}:{S_X+3}], s{sT+7} offen offset:2048")
    A(f"buffer_load_dwordx4 v[12:15], v{T+6}, s[{S_X}:{S_X+3}], s{sT+7} offen offset:2064")
    A(f"buffer_load_dwordx4 v[16:19], v{T+6}, s[{S_G}:{S_G+3}], 0 offen")
    A(f"buffer_load_dwordx4 v[20:23], v{T+6}, s[{S_G}:{S_G+3}], 0 offen offset:16")

    def dma_x(slot_s, half):
        out = [f"s_add_u32 m0, s{slot_s}, {half * 4096}"]
        for n in range(4):
            out.append(f"buffer_load_dwordx4 v{XV+n}, s[{S_X}:{S_X+3}], s{sX} offen offset:{n*1024} lds")
        return out
    def dma_w(slot):
        return [f"s_add_u32 m0, s{sWb}, {slot * 16384}",
                f"buffer_load_dwordx4 v{WZV}, s[{S_WZ}:{S_WZ+3}], s{sWZ} offen lds",
                f"buffer_load_dwordx4 v{WZV+1}, s[{S_WZ}:{S_WZ+3}], s{sWZ} offen offset:1024 lds",
                f"s_add_u32 m0, s{sWb}, {slot * 16384 + 2048}",
                f"buffer_load_dwordx4 v{WQV}, s[{S_WQ}:{S_WQ+3}], s{sWQ} offen lds",
                f"buffer_load_dwordx4 v{WQV+1}, s[{S_WQ}:{S_WQ+3}], s{sWQ} offen offset:1024 lds"]
    def emit_dma(lst):
        for x in lst:
            A(x)
            if x.startswith("s_add_u32 m0"): A("s_nop 0")
    adv_w = [f"s_add_u32 s{sWZ}, s{sWZ}, {32*7168}", f"s_add_u32 s{sWQ}, s{sWQ}, {32*6144}"]
    A(f"s_mov_b32 s{sX}, 0")
    A(f"s_mov_b32 s{sWZ}, 0")
    A(f"s_mov_b32 s{sWQ}, 0")
    emit_dma(dma_x(sA, 0))
    emit_dma(dma_w(0)); emit_dma(adv_w)
    A(f"s_mov_b32 s{sX}, 65536"); emit_dma(dma_x(sA, 1))
    A(pf(0))
    emit_dma(dma_w(1)); emit_dma(adv_w)
    A(f"s_mov_b32 s{sX}, 128"); emit_dma(dma_x(sB, 0))
    A(pf(1))
    emit_dma(dma_w(2)); emit_dma(adv_w)
    A(f"s_mov_b32 s{sX}, {128+65536}"); emit_dma(dma_x(sB, 1))
    A(pf(2))
    emit_dma(dma_w(3)); emit_dma(adv_w)
    A(f"s_mov_b32 s{sX}, 256"); emit_dma(dma_x(sC, 0))
    A(pf(3))
    A(f"s_add_u32 s{sPF}, s{sPF}, {2*MB}")
    A(f"s_mov_b32 s{sX}, {256+65536}")
    A(f"v_and_b32 v{T}, 15, v{LANE}")
    A(f"v_lshrrev_b32 v{T+1}, 2, v{T}")
    A(f"v_lshlrev_b32 v{T+1}, 3, v{T+1}")
    A(f"v_and_b32 v{T+2}, 3, v{T}")
    A(f"v_add_u32 v{T+1}, v{T+1}, v{T+2}")
    A(f"v_lshlrev_b32 v{T+1}, 7, v{T+1}")
    A(f"v_lshrrev_b32 v{T+2}, 1, v{T}")
    A(f"v_lshrrev_b32 v{T+3}, 4, v{LANE}")
    A(f"v_xor_b32 v{T+3}, v{T+3}, v{T+2}")
    A(f"v_lshl_add_u32 v{XL}, v{T+3}, 4, v{T+1}")
    A(f"v_xor_b32 v{XL+1}, 64, v{XL}")
    A(f"v_lshrrev_b32 v{T}, 4, v{LANE}")
    A(f"v_bfe_u32 v{T+1}, v{LANE}, 2, 2")
    A(f"v_and_b32 v{T+2}, 1, v{T}")
    A(f"v_lshl_or_b32 v{T+2}, v{T+2}, 2, v{T+1}")
    A(f"v_lshlrev_b32 v{T+3}, 12, v{T}")
    A(f"v_lshl_add_u32 v{T+3}, v{T+1}, 8, v{T+3}")
    A(f"v_and_b32 v{T+4}, 3, v{LANE}")
    A(f"v_lshl_add_u32 v{T+3}, v{T+4}, 3, v{T+3}")
    A(f"v_add_u32 v{T+3}, {WBASE}, v{T+3}")
    A(f"s_and_b32 s{sT+2}, s{sJ}, 1")
    for b in range(7):
        A(f"s_add_u32 s{sT+3}, s{sT+2}, {b}")
        A(f"v_xor_b32 v{T+4}, s{sT+3}, v{T+2}")
        A(f"v_lshl_add_u32 v{WR+b}, v{T+4}, 5, v{T+3}")
    for b in range(6):
        A(f"v_xor_b32 v{T+4}, {b}, v{T+2}")
        A(f"v_lshl_add_u32 v{WR+7+b}, v{T+4}, 5, v{T+3}")
    for r in range(40, 208):
        A(f"v_mov_b32 v{r}, 0")
    A("s_waitcnt vmcnt(40)")
    A("v_mov_b32 v24, 0")
    A("v_mov_b32 v25, 0")
    for r in range(8):
        A(f"v_lshlrev_b32 v26, 16, v{16+r}")
        A(f"v_and_b32 v27, 0xffff0000, v{16+r}")
        for row in range(2):
            A(f"v_lshlrev_b32 v28, 16, v{row*8+r}")
            A(f"v_and_b32 v29, 0xffff0000, v{row*8+r}")
            A(f"v_fmac_f32 v{24+row}, v26, v28")
            A(f"v_fmac_f32 v{24+row}, v27, v29")
    for sh in (8, 4, 2, 1):
        A.nop(2)
        A(f"v_add_f32_dpp v24, v24, v24 row_ror:{sh} row_mask:0xf bank_mask:0xf")
        A(f"v_add_f32_dpp v25, v25, v25 row_ror:{sh} row_mask:0xf bank_mask:0xf")
    A.nop(2)
    for row in range(2):
        for q in range(4):
            A(f"v_readlane_b32 s{sT+8+row*4+q}, v{24+row}, {16*q}")
    A.nop(4)
    for row in range(2):
        A(f"v_mov_b32 v{26+row}, s{sT+8+row*4}")
        for q in range(1, 4):
            A(f"v_add_f32 v{26+row}, s{sT+8+row*4+q}, v{26+row}")
    A(f"v_cmp_eq_u32 vcc, 1, v{LANE}")
    A.nop(2)
    A("v_cndmask_b32 v26, v26, v27, vcc")
    A(f"v_mul_f32 v26, {hex(f2u(-math.log2(math.e)))}, v26")
    A("v_exp_f32 v26, v26")
    A.nop(1)
    A("v_add_f32 v26, 1.0, v26")
    A(f"v_rcp_f32 v{GATEV}, v26")
    for r in range(0, 40):
        A(f"v_mov_b32 v{r}, 0")

    def reads(snext, xkk):
        st = snext & 1
        slot = snext % 4
        out = []
        for i in range(4):
            out.append(f"ds_read_b128 {ar(xf(st,i),4)}, v{XR} offset:{(i>>1)*4096+(i&1)*512}")
        for b in range(13):
            for t in range(2):
                off = slot * 16384 + t * 1024 + (2048 if b >= 7 else 0)
                out.append(f"ds_read_b64_tr_b16 {ar(wf(st,b)+2*t,2)}, v{WR+b} offset:{off}")
        return out
    A("s_waitcnt vmcnt(28)")
    A("s_barrier")
    A(f"v_add_u32 v{XR}, s{sA}, v{XL}")
    for r in reads(0, 0): A(r)
    A("s_waitcnt vmcnt(19) lgkmcnt(0)")
    A("s_barrier")

    stamp(A, 1)
    A(f"s_cmp_lt_u32 s{sJ}, 16")
    A(f"s_cbranch_scc1 {name}_v0")
    A(f"s_cmp_lt_u32 s{sJ}, 21")
    A(f"s_cbranch_scc1 {name}_v1")
    A(f"s_cmp_eq_u32 s{sJ}, 21")
    A(f"s_cbranch_scc1 {name}_v2")
    A(f"s_branch {name}_v3")

    variants = {0: (False, (False, False, False)), 1: (True, (False, False, False)), 2: (True, (False, True, True)), 3: (True, (True, True, True))}
    for v, (z2, vt) in variants.items():
        ax = [z2] * 7 + [vt[0]] * 2 + [vt[1]] * 2 + [vt[2]] * 2
        def mfmas(s):
            st = s & 1
            out = []
            for b in range(13):
                for i in range(4):
                    X, W = ar(xf(st, i), 4), ar(wf(st, b), 4)
                    a0, b0 = (X, W) if ax[b] else (W, X)
                    out.append(f"v_mfma_f32_16x16x32_bf16 {vr(acc(b,i),4)}, {a0}, {b0}, {vr(acc(b,i),4)}")
            return out
        def substep(q, dma, do_reads=True, endwait="s_waitcnt vmcnt(19) lgkmcnt(0)", barrier=True, extra=[]):
            rd_slot = [sA, sB, sB, sC][q]
            dma_slot = [sC, sA, sA, sB][q]
            half = [1, 0, 1, 0][q]
            kk = (q + 1) & 1
            rds = reads(q + 1, kk) if do_reads else []
            ds = (dma_w(q) + dma_x(dma_slot, half) + [pf(q)]) if dma else []
            seq = [f"v_add_u32 v{XR}, s{rd_slot}, v{XL+kk}"] if do_reads else []
            ri = di = 0
            while ri < len(rds) or di < len(ds):
                for _ in range(3):
                    if ri < len(rds): seq.append(rds[ri]); ri += 1
                if di < len(ds): seq.append(ds[di]); di += 1
            if dma:
                seq += adv_w
                seq.append(f"s_add_u32 s{sX}, s{sX}, 65536" if half == 0 else f"s_sub_u32 s{sX}, s{sX}, {65536-128}")
            seq += extra
            m = mfmas(q)
            assert len(seq) <= len(m), len(seq)
            for k in range(len(m)):
                A(m[k])
                if k < len(seq): A(seq[k])
            if endwait: A(endwait)
            if barrier: A("s_barrier")
        A.raw(".p2align 6")
        A.label(f"{name}_v{v}")
        A(f"s_mov_b32 s{sCnt}, 7")
        A.label(f"{name}_v{v}_loop")
        for q in range(4):
            ex = []
            if q == 3:
                ex = [f"s_mov_b32 s{sT}, s{sC}", f"s_mov_b32 s{sC}, s{sB}", f"s_mov_b32 s{sB}, s{sA}", f"s_mov_b32 s{sA}, s{sT}",
                      f"s_sub_u32 s{sCnt}, s{sCnt}, 1", f"s_add_u32 s{sPF}, s{sPF}, {2*MB}"]
            substep(q, True, extra=ex)
        A(f"s_cmp_lg_u32 s{sCnt}, 0")
        A(f"s_cbranch_scc1 {name}_v{v}_loop")
        substep(0, False, endwait="s_waitcnt vmcnt(10) lgkmcnt(0)")
        substep(1, False, endwait="s_waitcnt vmcnt(5) lgkmcnt(0)")
        substep(2, False, endwait="s_waitcnt lgkmcnt(0)", barrier=False)
        substep(3, False, do_reads=False, endwait=None, barrier=False)
        A.nop(8)
        stamp(A, 2)
        E = 208
        A(f"v_lshlrev_b32 v{T}, 2, v{LANE}")
        A(f"v_mov_b32 v{T+1}, 0x80000000")
        A(f"v_cmp_lt_u32 vcc, 1, v{LANE}")
        A(f"s_lshl_b32 s{sT+7}, s{sT+6}, 2")
        A(f"s_add_u32 s{sT+7}, s{sT+7}, {WS_GATE}")
        A(f"v_cndmask_b32 v{T}, v{T}, v{T+1}, vcc")
        A(f"buffer_store_dword v{GATEV}, v{T}, s[{S_WS}:{S_WS+3}], s{sT+7} offen")
        A(f"s_lshl_b32 s{sT+7}, s{sPF2}, 8")
        A(f"s_add_u32 s{sT+7}, s{sT+7}, {WS_FLAG}")
        A(f"s_cmp_lt_u32 s{sPF2}, 64")
        A(f"s_cselect_b32 s{sT+7}, s{sT+7}, 0x70000000")
        A(f"v_lshlrev_b32 v{T+2}, 2, v{LANE}")
        A(f"v_mov_b32 v{T+3}, 0")
        A(f"buffer_store_dword v{T+3}, v{T+2}, s[{S_WS}:{S_WS+3}], s{sT+7} offen")
        A(f"s_lshl_b32 s{sT+8}, s{sRB}, 3")
        A(f"s_lshl_b32 s{sT+9}, s{sW}, 1")
        A(f"s_add_u32 s{sT+8}, s{sT+8}, s{sT+9}")
        tsel = 0
        def tmp4():
            nonlocal tsel
            tsel = (tsel + 1) % 4
            return E + 4 * tsel
        for u in range(3):
            b0, b1 = 7 + 2 * u, 8 + 2 * u
            A(f"s_mul_i32 s{sT+10}, s{sJ}, 3")
            A(f"s_add_u32 s{sT+10}, s{sT+10}, {u}")
            if not vt[u]:
                A(f"s_lshl_b32 s{sT+11}, s{sT+10}, 17")
                A(f"s_lshl_b32 s{sT+12}, s{sT+8}, 11")
                A(f"s_add_u32 s{sT+11}, s{sT+11}, s{sT+12}")
                A(f"s_cmp_lt_u32 s{sT+10}, 32")
                A(f"s_cselect_b32 s{sT+14}, {hex(f2u(QSCALE))}, 1.0")
                A(f"s_mov_b32 s{sT+15}, s{sT+14}")
                for i in range(4):
                    t = tmp4()
                    for bb in (b0, b1):
                        for h in range(2):
                            r = acc(bb, i) + 2 * h
                            A(f"v_pk_mul_f32 {vr(r,2)}, {vr(r,2)}, s[{sT+14}:{sT+15}]")
                    A(f"v_cvt_pk_bf16_f32 v{t}, v{acc(b0,i)}, v{acc(b0,i)+1}")
                    A(f"v_cvt_pk_bf16_f32 v{t+1}, v{acc(b0,i)+2}, v{acc(b0,i)+3}")
                    A(f"v_cvt_pk_bf16_f32 v{t+2}, v{acc(b1,i)}, v{acc(b1,i)+1}")
                    A(f"v_cvt_pk_bf16_f32 v{t+3}, v{acc(b1,i)+2}, v{acc(b1,i)+3}")
                    A(f"buffer_store_dwordx4 {vr(t,4)}, v{L16}, s[{S_WS}:{S_WS+3}], s{sT+11} offen offset:{i*1024}")
            else:
                A(f"s_lshl_b32 s{sT+11}, s{sT+10}, 17")
                A(f"s_lshl_b32 s{sT+12}, s{sT+8}, 11")
                A(f"s_add_u32 s{sT+11}, s{sT+11}, s{sT+12}")
                for p in range(2):
                    for db, bb in enumerate((b0, b1)):
                        t = tmp4()
                        A(f"v_cvt_pk_bf16_f32 v{t}, v{acc(bb,2*p)}, v{acc(bb,2*p)+1}")
                        A(f"v_cvt_pk_bf16_f32 v{t+1}, v{acc(bb,2*p)+2}, v{acc(bb,2*p)+3}")
                        A(f"v_cvt_pk_bf16_f32 v{t+2}, v{acc(bb,2*p+1)}, v{acc(bb,2*p+1)+1}")
                        A(f"v_cvt_pk_bf16_f32 v{t+3}, v{acc(bb,2*p+1)+2}, v{acc(bb,2*p+1)+3}")
                        A(f"buffer_store_dwordx4 {vr(t,4)}, v{L16}, s[{S_WS}:{S_WS+3}], s{sT+11} offen offset:{p*2048+db*1024}")
        G0 = 112
        SUM = 128
        SQ = 144
        CA = 160
        A(f"s_mov_b32 s{sT+16}, {hex(f2u(GELU_B))}")
        A(f"s_mov_b32 s{sT+17}, {hex(f2u(GELU_B))}")
        A(f"s_mov_b32 s{sT+18}, 1.0")
        A(f"s_mov_b32 s{sT+19}, 1.0")
        A.nop(2)
        A(f"v_mov_b32 v{CA}, {hex(f2u(GELU_A))}")
        A(f"v_mov_b32 v{CA+1}, {hex(f2u(GELU_A))}")
        if z2:
            A(f"s_mul_i32 s{sT+11}, s{sT+8}, {112*1024}")
            A(f"s_mul_i32 s{sT+12}, s{sJ}, {7*1024}")
            A(f"s_add_u32 s{sT+11}, s{sT+11}, s{sT+12}")
            A(f"s_add_u32 s{sT+11}, s{sT+11}, {WS_Z2 - 16*7*1024}")
            pstr, fstr = 112 * 1024, 1024
        else:
            A(f"s_mul_i32 s{sT+11}, s{sJ}, {7*65536}")
            A(f"s_lshl_b32 s{sT+12}, s{sT+8}, 10")
            A(f"s_add_u32 s{sT+11}, s{sT+11}, s{sT+12}")
            A(f"s_add_u32 s{sT+11}, s{sT+11}, {WS_Z1}")
            pstr, fstr = 1024, 65536
        for fb in range(7):
            base = acc(fb, 0)
            P = [base + 2 * k for k in range(8)]
            Tm = [G0 + 2 * k for k in range(8)]
            for k in range(8): A(f"v_pk_mul_f32 {vr(Tm[k],2)}, {vr(P[k],2)}, {vr(P[k],2)}")
            for k in range(8): A(f"v_pk_fma_f32 {vr(Tm[k],2)}, {vr(Tm[k],2)}, s[{sT+16}:{sT+17}], {vr(CA,2)}")
            for k in range(8): A(f"v_pk_mul_f32 {vr(Tm[k],2)}, {vr(Tm[k],2)}, {vr(P[k],2)}")
            for k in range(16): A(f"v_exp_f32 v{G0+k}, v{G0+k}")
            for k in range(8): A(f"v_pk_add_f32 {vr(Tm[k],2)}, {vr(Tm[k],2)}, s[{sT+18}:{sT+19}]")
            for k in range(16): A(f"v_rcp_f32 v{G0+k}, v{G0+k}")
            for k in range(8): A(f"v_pk_mul_f32 {vr(P[k],2)}, {vr(P[k],2)}, {vr(Tm[k],2)}")
            if z2:
                for k in range(8):
                    if fb == 0:
                        A(f"v_pk_mul_f32 {vr(SQ+2*k,2)}, {vr(P[k],2)}, {vr(P[k],2)}")
                    else:
                        A(f"v_pk_fma_f32 {vr(SQ+2*k,2)}, {vr(P[k],2)}, {vr(P[k],2)}, {vr(SQ+2*k,2)}")
                        src = base - 16 if fb == 1 else SUM
                        A(f"v_pk_add_f32 {vr(SUM+2*k,2)}, {vr(src+2*k,2)}, {vr(P[k],2)}")
            for p in range(2):
                t = tmp4()
                for k in range(4):
                    A(f"v_cvt_pk_bf16_f32 v{t+k}, v{base+8*p+2*k}, v{base+8*p+2*k+1}")
                A(f"s_add_u32 s{sT+12}, s{sT+11}, {fb*fstr+p*pstr}")
                A(f"buffer_store_dwordx4 {vr(t,4)}, v{L16}, s[{S_WS}:{S_WS+3}], s{sT+12} offen")
        if z2:
            for sh in (8, 4, 2, 1):
                for k in range(32):
                    A(f"v_add_f32_dpp v{SUM+k}, v{SUM+k}, v{SUM+k} row_ror:{sh} row_mask:0xf bank_mask:0xf")
            A(f"v_lshrrev_b32 v{T}, 4, v{LANE}")
            A(f"v_lshlrev_b32 v{T}, 5, v{T}")
            A(f"v_and_b32 v{T+2}, 15, v{LANE}")
            A(f"v_mov_b32 v{T+1}, 0x80000000")
            A(f"v_cmp_ne_u32 vcc, 0, v{T+2}")
            A(f"s_lshl_b32 s{sT+11}, s{sRB}, 4")
            A(f"s_add_u32 s{sT+11}, s{sT+11}, s{sJ}")
            A(f"s_lshl_b32 s{sT+11}, s{sT+11}, 11")
            A(f"v_cndmask_b32 v{T}, v{T}, v{T+1}, vcc")
            A(f"s_lshl_b32 s{sT+12}, s{sW}, 8")
            A(f"s_add_u32 s{sT+11}, s{sT+11}, s{sT+12}")
            A(f"s_add_u32 s{sT+11}, s{sT+11}, {WS_STAT - 16*2048}")
            for st, R in enumerate((SUM, SQ)):
                for i in range(4):
                    A(f"buffer_store_dwordx4 {vr(R+4*i,4)}, v{T}, s[{S_WS}:{S_WS+3}], s{sT+11} offen offset:{st*1024+(i>>1)*128+(i&1)*16}")
        stamp(A, 3)
        stamp_flush(A, 5, S_WS, 0, T)
        A("s_endpgm")
    A.label(f"{name}_end")
    A("s_endpgm")
    return kernel_desc(name, 400, 256)
```

```python
from asmlib import *
import math, os

K2Q_LDS = 163840
WS_F0 = WS_FLAG
WS_F1 = WS_FLAG + 4096
WS_F2 = WS_FLAG + 8192

S_WS, S_K, S_V, S_WSP, S_WOUT, S_WO, S_Z, S_B, S_A, S_W, S_O = 4, 8, 12, 16, 20, 24, 28, 32, 36, 40, 44
sW, sHead, sQb, sTb, sC = 48, 49, 50, 51, 52
sOff, sCnt = 53, 54
sSl = [55, 56, 57]
sP1, sP2 = 58, 59
sM0a, sM0b = 60, 61
sF = 62
sSpin = 63
sT = 64
sX, sZ, sRd, sDm = 76, 77, 78, 3
L16, LANE, L4, ONEV = 252, 253, 254, 255
ZERO = 251

def mf32(d, a, b, c): return f"v_mfma_f32_32x32x16_bf16 {vr(d,16)}, {vr(a,4)}, {vr(b,4)}, {c}"
def mf16(d, a, b): return f"v_mfma_f32_16x16x32_bf16 {vr(d,4)}, {vr(a,4)}, {vr(b,4)}, {vr(d,4)}"
def S4(s): return f"s[{s}:{s+3}]"
def isvm(x): return x.startswith("buffer_")

class VM:
    def __init__(self): self.ops = []
    def add(self, tag, n=1): self.ops += [tag] * n
    def after(self, *tags):
        last = max(i for i, t in enumerate(self.ops) if t in tags)
        return len(self.ops) - 1 - last

def emit(A, lst):
    for x in lst:
        A(x)
        if " m0," in x: A("s_nop 0")

def check(A, name, vt, soff, mask=None):
    A(f"s_mov_b32 s{sSpin}, 0x8000")
    A.label(name)
    A(f"v_cmp_eq_u32 vcc, 0, v{vt}")
    A.nop(4)
    if mask is not None: A(f"s_and_b32 vcc_hi, vcc_hi, {hex(mask)}")
    A(f"s_cmp_eq_u64 vcc, 0")
    A(f"s_cbranch_scc1 {name}_ok")
    A("s_sleep 16")
    A(f"buffer_load_dword v{vt}, v{L4}, {S4(S_WS)}, s{soff} offen sc1")
    A("s_waitcnt vmcnt(0)")
    A(f"s_sub_u32 s{sSpin}, s{sSpin}, 1")
    A(f"s_cmp_lg_u32 s{sSpin}, 0")
    A(f"s_cbranch_scc1 {name}")
    A.label(f"{name}_ok")

S_ = [0, 16]; O_ = [32, 48]; CI = [64, 80]; P_ = [96, 104]
def QF_(X, m): return 112 + X * 8 + m * 4
def KB(buf, m): return 128 + buf * 8 + m * 4
def VB(buf, m): return 144 + buf * 8 + m * 4
L_ = [160, 164]; ONES = 168
AR, AL = 172, 173
GV = [176, 177]
T = 178
FLG = 194
PFD = 196
NZ = 200
def sacc(fi, ti): return (fi * 4 + ti) * 4
def saf(st, fi): return 64 + st * 32 + fi * 4
def sbf(st, ti): return 64 + st * 32 + 16 + ti * 4
Z1R, BV, GVv, XV, XL, ZL = 200, 232, 236, 240, 244, 246
XRa, ZRa, XRb, ZRb = 247, 248, 249, 250
U = 176
NS = 4
sZ1, sBo = 100, 101
def facc(ti, nb): return (ti * 4 + nb) * 4
def aset(st, ti): return st * 32 + ti * 4
def wfr(st, nb): return 128 + st * 16 + nb * 4
WV, WRa, WRb = 160, 164, 168
sA, sA2, sWo, sM = 55, 56, 57, 58
sF1, sF2 = 59, 60

def sblock(u): return 32768 * (1 + ((u + 1) % 4))

def gen_k2q(A, name):
    kernel_begin(A, name)
    A("s_cmp_ge_u32 s2, 256")
    A(f"s_cbranch_scc1 {name}_end")
    stamp(A, 0)
    fins = [srd(A, S_WS, KA_WS, WS_SIZE), srd(A, S_WSP, KA_WSP, 2048 * 4096), srd(A, S_WOUT, KA_WOUT, 1792 * 2048),
            srd(A, S_WO, KA_WO, 1024 * 2048), srd(A, S_B, KA_BSP, 4096), srd(A, S_O, KA_OUT, 2048 * 2048)]
    A(f"v_and_b32 v{LANE}, 63, v0")
    A(f"v_lshrrev_b32 v{T}, 6, v0")
    A(f"s_and_b32 s{sT}, s2, 7")
    A(f"v_readfirstlane_b32 s{sW}, v{T}")
    A(f"s_lshr_b32 s{sT+1}, s2, 3")
    A(f"s_lshl_b32 s{sHead}, s{sT}, 2")
    A(f"s_lshr_b32 s{sT+2}, s{sT+1}, 3")
    A(f"s_add_u32 s{sHead}, s{sHead}, s{sT+2}")
    A(f"s_and_b32 s{sQb}, s{sT+1}, 7")
    A(f"s_lshr_b32 s{sTb}, s{sT}, 1")
    A(f"s_lshl_b32 s{sTb}, s{sTb}, 2")
    A(f"s_and_b32 s{sT+2}, s{sT+1}, 3")
    A(f"s_add_u32 s{sTb}, s{sTb}, s{sT+2}")
    A(f"s_and_b32 s{sC}, s{sT}, 1")
    A(f"s_lshl_b32 s{sC}, s{sC}, 3")
    A(f"s_lshr_b32 s{sT+2}, s{sT+1}, 2")
    A(f"s_add_u32 s{sC}, s{sC}, s{sT+2}")
    A(f"s_mov_b32 s79, s{sW}")
    A(f"v_lshlrev_b32 v{L16}, 4, v{LANE}")
    A(f"v_lshlrev_b32 v{L4}, 2, v{LANE}")
    A(f"s_lshl_b32 s{sT+3}, s{sTb}, 2")
    A(f"s_add_u32 s{sT+3}, s{sT+3}, s{sW}")
    A(f"s_mul_i32 s{sT+4}, s{sT+3}, {112*1024}")
    A(f"s_lshl_b32 s{sT+5}, s{sC}, 13")
    A(f"s_add_u32 s{sT+4}, s{sT+4}, s{sT+5}")
    A(f"s_cmp_lt_u32 s{sC}, 14")
    A(f"s_cselect_b32 s{sT+4}, s{sT+4}, 0x70000000")
    A(f"s_add_u32 s{sT+5}, s{sT+4}, {WS_Z2}")
    A(f"s_add_u32 s{sT+6}, s{sT+4}, {WS_Z2N}")
    A(f"s_lshr_b32 s{sT+7}, s{sT+3}, 3")
    A(f"s_lshl_b32 s{sT+7}, s{sT+7}, 15")
    A(f"s_and_b32 s{sT+8}, s{sT+3}, 7")
    A(f"s_lshl_b32 s{sT+8}, s{sT+8}, 7")
    A(f"s_add_u32 s{sT+7}, s{sT+7}, s{sT+8}")
    A(f"s_add_u32 s{sT+7}, s{sT+7}, {WS_STAT}")
    A(f"v_and_b32 v{T+6}, 31, v{LANE}")
    A(f"v_lshrrev_b32 v{T+7}, 5, v{LANE}")
    A(f"v_lshlrev_b32 v{T+7}, 14, v{T+7}")
    A(f"v_lshl_add_u32 v{T+7}, v{T+6}, 2, v{T+7}")
    A(f"s_lshl_b32 s{sT+8}, s{sHead}, 17")
    A(f"s_lshl_b32 s{sOff}, s{sW}, 11")
    A(f"s_lshl_b32 s{sM0a}, s{sW}, 11")
    A(f"s_add_u32 s{sM0b}, s{sM0a}, 8192")
    A("s_waitcnt lgkmcnt(0)")
    fins[0]()
    ST = NZ + 32
    vm = VM()
    for sl in range(8):
        A(f"buffer_load_dword v{ST+sl}, v{T+7}, {S4(S_WS)}, s{sT+7} offen")
        A(f"buffer_load_dword v{ST+8+sl}, v{T+7}, {S4(S_WS)}, s{sT+7} offen offset:1024")
        A(f"s_add_u32 s{sT+7}, s{sT+7}, 2048")
    vm.add("stat", 16)
    A(f"s_add_u32 s{sT+7}, s{sT+5}, 4096")
    for i in range(8):
        A(f"buffer_load_dwordx4 {vr(NZ+4*i,4)}, v{L16}, {S4(S_WS)}, s{sT+5 if i < 4 else sT+7} offen offset:{(i&3)*1024}")
    vm.add("z2", 8)
    for f in fins[1:]: f()
    for S, off in ((S_K, WS_KF), (S_V, WS_VF)):
        A(f"s_add_u32 s{S}, s{S_WS}, s{sT+8}")
        A(f"s_addc_u32 s{S+1}, s{S_WS+1}, 0")
        A(f"s_add_u32 s{S}, s{S}, {off}")
        A(f"s_addc_u32 s{S+1}, s{S+1}, 0")
        A(f"s_mov_b32 s{S+2}, 131072")
        A(f"s_mov_b32 s{S+3}, 0x00020000")
    def dma(slot_s):
        return [f"s_add_u32 m0, s{slot_s}, s{sM0a}",
                f"buffer_load_dwordx4 v{L16}, {S4(S_K)}, s{sOff} offen lds",
                f"buffer_load_dwordx4 v{L16}, {S4(S_K)}, s{sOff} offen offset:1024 lds",
                f"s_add_u32 m0, s{slot_s}, s{sM0b}",
                f"buffer_load_dwordx4 v{L16}, {S4(S_V)}, s{sOff} offen lds",
                f"buffer_load_dwordx4 v{L16}, {S4(S_V)}, s{sOff} offen offset:1024 lds",
                f"s_add_u32 s{sOff}, s{sOff}, 8192"]
    A(f"s_mov_b32 s{sSl[0]}, 0")
    A(f"s_mov_b32 s{sSl[1]}, 16384")
    A(f"s_mov_b32 s{sSl[2]}, 32768")
    emit(A, dma(sSl[0])); vm.add("kv0", 4)
    A(f"v_bfe_u32 v{T}, v{LANE}, 4, 1")
    A(f"v_lshrrev_b32 v{T+1}, 5, v{LANE}")
    A(f"v_and_b32 v{T+2}, 15, v{LANE}")
    A(f"v_lshlrev_b32 v{T+3}, 10, v{T}")
    A(f"v_lshl_add_u32 v{T+3}, v{T+1}, 8, v{T+3}")
    A(f"v_lshl_add_u32 v{T+3}, v{T+2}, 4, v{T+3}")
    A(f"v_lshrrev_b32 v{T+4}, 2, v{T+2}")
    A(f"v_lshlrev_b32 v{T+4}, 3, v{T+4}")
    A(f"v_and_b32 v{T+5}, 3, v{LANE}")
    A(f"v_add_u32 v{T+13}, v{T+4}, v{T+5}")
    A(f"v_lshl_add_u32 v{T+4}, v{T}, 2, v{T+13}")
    A(f"v_lshlrev_b32 v{T+4}, 2, v{T+4}")
    A(f"s_lshl_b32 s{sT+9}, s{sQb}, 3")
    A(f"s_lshl_b32 s{sT+10}, s{sW}, 1")
    A(f"s_add_u32 s{sT+9}, s{sT+9}, s{sT+10}")
    A(f"s_lshl_b32 s{sT+10}, s{sT+9}, 11")
    A(f"s_add_u32 s{sT+10}, s{sT+10}, s{sT+8}")
    A(f"s_lshl_b32 s{sT+11}, s{sT+9}, 7")
    A(f"s_add_u32 s{sT+11}, s{sT+11}, {WS_GATE}")
    for X in range(2):
        for m in range(2):
            A(f"buffer_load_dwordx4 {vr(QF_(X,m),4)}, v{T+3}, {S4(S_WS)}, s{sT+10} offen offset:{X*2048+m*512}")
    for X in range(2):
        A(f"buffer_load_dword v{GV[X]}, v{T+4}, {S4(S_WS)}, s{sT+11} offen offset:{X*128}")
    vm.add("q", 6)
    A(f"v_mov_b32 v{ONEV}, 1")
    A(f"v_min_u32 v{ZERO}, 1, v{LANE}")
    A(f"v_lshlrev_b32 v{ZERO}, 26, v{ZERO}")
    A(f"s_lshr_b32 s{sP1}, s{sT}, 1")
    A(f"s_lshl_b32 s{sP1}, s{sP1}, 21")
    A(f"s_lshl_b32 s{sP2}, s{sT+1}, 2")
    A(f"s_add_u32 s{sP2}, s{sP2}, s{sW}")
    A(f"s_lshl_b32 s{sP2}, s{sP2}, 10")
    A(f"s_add_u32 s{sP1}, s{sP1}, s{sP2}")
    A(f"s_lshl_b32 s{sP2}, s2, 2")
    A(f"s_add_u32 s{sP2}, s{sP2}, s{sW}")
    A(f"s_lshl_b32 s{sP2}, s{sP2}, 10")
    A(f"s_lshl_b32 s{sT+9}, s{sC}, 8")
    A(f"s_add_u32 s{sT+9}, s{sT+9}, {WS_F0}")
    A(f"s_lshl_b32 s{sF}, s{sT+3}, 2")
    A(f"s_add_u32 s{sF}, s{sF}, s{sT+9}")
    A(f"s_cmp_lt_u32 s{sC}, 14")
    A(f"s_cselect_b32 s{sF}, s{sF}, 0x70000000")
    A(f"v_bfe_u32 v{T+5}, v{LANE}, 3, 1")
    A(f"v_lshlrev_b32 v{AL}, 10, v{T+5}")
    A(f"v_lshl_add_u32 v{AL}, v{T+1}, 8, v{AL}")
    A(f"v_lshl_add_u32 v{AL}, v{T}, 7, v{AL}")
    A(f"v_and_b32 v{T+5}, 7, v{LANE}")
    A(f"v_lshl_add_u32 v{AL}, v{T+5}, 4, v{AL}")
    A(f"v_mov_b32 v{AR}, v{AL}")
    A(f"v_and_b32 v{T+5}, 1, v{LANE}")
    A(f"v_cmp_eq_u32 vcc, v{T+5}, v{T}")
    A(f"v_mov_b32 v{T+8}, 0x3f803f80")
    A.nop(1)
    for k in range(4): A(f"v_cndmask_b32 v{ONES+k}, 0, v{T+8}, vcc")
    for r in list(range(32, 64)) + list(range(96, 112)) + list(range(144, 168)):
        A(f"v_mov_b32 v{r}, 0")
    A(f"s_waitcnt vmcnt({vm.after('stat')})")
    for sl in range(1, 8):
        A(f"v_add_f32 v{ST}, v{ST}, v{ST+sl}")
        A(f"v_add_f32 v{ST+8}, v{ST+8}, v{ST+8+sl}")
    A(f"v_mov_b32 v{ST+1}, v{ST}")
    A(f"v_mov_b32 v{ST+9}, v{ST+8}")
    A.nop(2)
    A(f"v_permlane32_swap_b32 v{ST}, v{ST+1}")
    A(f"v_permlane32_swap_b32 v{ST+8}, v{ST+9}")
    A.nop(2)
    A(f"v_add_f32 v{ST}, v{ST}, v{ST+1}")
    A(f"v_add_f32 v{ST+8}, v{ST+8}, v{ST+9}")
    A(f"v_mul_f32 v{ST}, {hex(f2u(1/1792))}, v{ST}")
    A(f"v_mul_f32 v{ST+8}, {hex(f2u(1/1792))}, v{ST+8}")
    A(f"v_fma_f32 v{ST+8}, -v{ST}, v{ST}, v{ST+8}")
    A(f"v_max_f32 v{ST+8}, 0, v{ST+8}")
    A(f"v_add_f32 v{ST+8}, {hex(f2u(1e-5))}, v{ST+8}")
    A(f"v_rsq_f32 v{ST+2}, v{ST+8}")
    A(f"s_lshl_b32 s{sT+7}, s{sW}, 8")
    A(f"s_add_u32 s{sT+7}, s{sT+7}, 65536")
    A(f"v_mul_f32 v{ST+3}, v{ST}, v{ST+2}")
    A(f"v_sub_f32 v{ST+3}, 0, v{ST+3}")
    A(f"v_lshlrev_b32 v{ST+4}, 3, v{T+6}")
    A(f"v_add_u32 v{ST+4}, s{sT+7}, v{ST+4}")
    A(f"ds_write_b64 v{ST+4}, {vr(ST+2,2)}")
    A(f"v_lshrrev_b32 v{ST+5}, 4, v{LANE}")
    A(f"v_lshlrev_b32 v{ST+5}, 6, v{ST+5}")
    A(f"v_add_u32 v{T+9}, s{sT+7}, v{ST+5}")
    A("s_waitcnt lgkmcnt(0)")
    for k in range(4): A(f"ds_read_b128 {vr(ST+4*k,4)}, v{T+9} offset:{16*k}")
    A(f"s_add_u32 s{sT+7}, s{sT+6}, 4096")
    A(f"s_waitcnt vmcnt({vm.after('z2')}) lgkmcnt(0)")
    for i in range(8):
        for k in range(4):
            r = NZ + 4 * i + k
            A(f"v_lshlrev_b32 v{T+8}, 16, v{r}")
            A(f"v_and_b32 v{T+9}, 0xffff0000, v{r}")
            A(f"v_fma_f32 v{T+8}, v{T+8}, v{ST+4*k}, v{ST+4*k+1}")
            A(f"v_fma_f32 v{T+9}, v{T+9}, v{ST+4*k+2}, v{ST+4*k+3}")
            A(f"v_cvt_pk_bf16_f32 v{r}, v{T+8}, v{T+9}")
        A(f"buffer_store_dwordx4 {vr(NZ+4*i,4)}, v{L16}, {S4(S_WS)}, s{sT+6 if i < 4 else sT+7} offen offset:{(i&3)*1024} sc1")
    vm.add("z2n", 8)
    emit(A, dma(sSl[1])); vm.add("kv1", 4)
    PFS = {2: [f"buffer_load_dwordx4 {vr(PFD,4)}, v{L16}, {S4(S_WSP)}, s{sP1} offen", f"s_add_u32 s{sP1}, s{sP1}, 131072"],
           3: [f"buffer_load_dwordx4 {vr(PFD,4)}, v{L16}, {S4(S_WOUT)}, s{sP2} offen"],
           4: [f"buffer_load_dwordx4 {vr(PFD,4)}, v{L16}, {S4(S_WO)}, s{sP2} offen", f"s_add_u32 s{sP2}, s{sP2}, {MB}"]}
    def rdK(buf, tile): return [f"ds_read_b128 {vr(KB(buf,m),4)}, v{AR} offset:{tile*2048+m*512}" for m in range(2)]
    def rdV(buf, tile): return [f"ds_read_b128 {vr(VB(buf,m),4)}, v{AR} offset:{8192+tile*2048+m*512}" for m in range(2)]
    A(f"s_waitcnt vmcnt({vm.after('q')})")
    A("s_barrier")
    for x in rdK(0, 0) + rdV(0, 0): A(x)
    emit(A, PFS[2] + PFS[2] + PFS[3] + PFS[4]); vm.add("pf", 4)
    emit(A, dma(sSl[2])); vm.add("kv2", 4)
    A("s_waitcnt lgkmcnt(0)")
    for X in range(2):
        A(mf32(S_[X], KB(0, 0), QF_(X, 0), "0"))
        A(mf32(S_[X], KB(0, 1), QF_(X, 1), vr(S_[X], 16)))
    A(f"s_lshl_b32 s{sT+1}, s{sTb}, 7")
    A(f"s_lshl_b32 s{sT+2}, s{sW}, 5")
    A(f"s_add_u32 s{sT+1}, s{sT+1}, s{sT+2}")
    A(f"v_lshrrev_b32 v{T+8}, 3, v{LANE}")
    A(f"v_add_u32 v{T+8}, s{sT+1}, v{T+8}")
    A(f"v_lshlrev_b32 v{T+8}, 12, v{T+8}")
    A(f"v_and_b32 v{T+9}, 7, v{LANE}")
    A(f"v_xor_b32 v{T+9}, v{T+9}, v{T}")
    for n in range(4):
        fx = ((n & 1) << 1) | (((n >> 1) & 1) << 2)
        A(f"v_xor_b32 v{T+10}, {fx}, v{T+9}")
        A(f"v_lshl_add_u32 v{T+10}, v{T+10}, 4, v{T+8}")
        A(f"v_add_u32 v{XV+n}, {n * 8 * 4096 - n * 1024}, v{T+10}")
    A(f"s_lshr_b32 s{sT+1}, s{sW}, 1")
    A(f"s_and_b32 s{sT+2}, s{sW}, 1")
    A(f"s_mul_i32 s{sZ}, s{sT+1}, {112*1024}")
    A(f"s_lshl_b32 s{sT+3}, s{sC}, 13")
    A(f"s_add_u32 s{sZ}, s{sZ}, s{sT+3}")
    A(f"s_lshl_b32 s{sT+3}, s{sT+2}, 12")
    A(f"s_add_u32 s{sZ}, s{sZ}, s{sT+3}")
    A(f"s_cmp_lt_u32 s{sC}, 14")
    A(f"s_cselect_b32 s{sZ}, s{sZ}, 0x70000000")
    A(f"s_mov_b32 s{sX}, 0")
    A(f"s_lshl_b32 s{sDm}, s{sW}, 12")
    A(f"s_lshl_b32 s{sT+3}, s{sC}, 3")
    A(f"s_lshl_b32 s{sT+4}, s{sT+1}, 2")
    A(f"s_add_u32 s{sT+3}, s{sT+3}, s{sT+4}")
    A(f"s_lshl_b32 s{sZ1}, s{sT+3}, 16")
    A(f"s_lshl_b32 s{sT+5}, s{sTb}, 2")
    A(f"s_lshl_b32 s{sT+6}, s{sT+2}, 1")
    A(f"s_add_u32 s{sT+5}, s{sT+5}, s{sT+6}")
    A(f"s_lshl_b32 s{sT+6}, s{sT+5}, 10")
    A(f"s_add_u32 s{sZ1}, s{sZ1}, s{sT+6}")
    A(f"s_add_u32 s{sZ1}, s{sZ1}, {WS_Z1}")
    A(f"s_lshl_b32 s{sBo}, s{sT+5}, 6")
    A(f"s_add_u32 s{S_Z}, s{S_WS}, {WS_Z2N}")
    A(f"s_addc_u32 s{S_Z+1}, s{S_WS+1}, 0")
    A(f"s_mov_b32 s{S_Z+2}, {64*112*1024}")
    A(f"s_mov_b32 s{S_Z+3}, 0x00020000")
    A(f"v_lshlrev_b32 v{T+8}, 7, v{T+13}")
    A(f"v_lshrrev_b32 v{T+9}, 1, v{T+2}")
    A(f"v_lshrrev_b32 v{T+10}, 4, v{LANE}")
    A(f"v_xor_b32 v{T+10}, v{T+10}, v{T+9}")
    A(f"v_lshl_add_u32 v{XL}, v{T+10}, 4, v{T+8}")
    A(f"s_lshl_b32 s{sT+4}, s{sT+2}, 13")
    A(f"s_add_u32 s{sT+4}, s{sT+4}, 16384")
    A(f"v_add_u32 v{XL}, s{sT+4}, v{XL}")
    A(f"v_xor_b32 v{XL+1}, 64, v{XL}")
    A(f"s_lshl_b32 s{sT+4}, s{sT+1}, 12")
    A(f"v_add_u32 v{ZL}, s{sT+4}, v{L16}")
    A(f"s_mov_b32 s{sRd}, {sblock(0)}")
    A(f"v_add_u32 v{XRa}, {sblock(0)}, v{XL}")
    A(f"v_add_u32 v{ZRa}, {sblock(0)}, v{ZL}")
    A(f"v_add_u32 v{XRb}, {sblock(0)}, v{XL+1}")
    A(f"v_add_u32 v{ZRb}, {sblock(0)}, v{ZL}")
    A(f"v_lshlrev_b32 v{T+14}, 1, v{T+13}")
    A(f"v_lshlrev_b32 v{T+15}, 2, v{T+13}")
    for X in range(2):
        s = S_[X]; t = T + 8 + X
        A(f"v_max3_f32 v{t}, v{s}, v{s+1}, v{s+2}")
        for k in range(3, 15, 2): A(f"v_max3_f32 v{t}, v{t}, v{s+k}, v{s+k+1}")
        A(f"v_max_f32 v{t}, v{t}, v{s+15}")
        A(f"v_mov_b32 v{t+2}, v{t}")
    A.nop(2)
    for X in range(2): A(f"v_permlane32_swap_b32 v{T+8+X}, v{T+10+X}")
    A.nop(2)
    for X in range(2): A(f"v_max_f32 v{T+8+X}, v{T+8+X}, v{T+10+X}")
    for X in range(2):
        for k in range(16): A(f"v_sub_f32 v{CI[X]+k}, 0, v{T+8+X}")
    A.nop(2)
    A(mf32(S_[0], KB(0, 0), QF_(0, 0), vr(CI[0], 16)))
    A(mf32(S_[0], KB(0, 1), QF_(0, 1), vr(S_[0], 16)))
    A(f"s_mov_b32 s{sCnt}, 14")
    A(f"s_sub_u32 s{sOff}, s{sOff}, 8192")
    A(f"s_mov_b32 s{sSl[0]}, 32768")
    A(f"s_mov_b32 s{sSl[1]}, 0")
    A(f"s_mov_b32 s{sSl[2]}, 16384")
    A.nop(8)
    stamp(A, 1)
    D = dma(sSl[0])
    flag0 = f"buffer_store_dword v{ONEV}, v{ZERO}, {S4(S_WS)}, s{sF} offen sc1"
    ROT = [[D[6], f"s_mov_b32 s{sT}, s{sSl[0]}", f"s_mov_b32 s{sSl[0]}, s{sSl[1]}"],
           [f"s_mov_b32 s{sSl[1]}, s{sSl[2]}", f"s_mov_b32 s{sSl[2]}, s{sT}", f"s_sub_u32 s{sCnt}, s{sCnt}, 1"]]
    def halfstep(n, ex, W, reads=True, qk=True):
        X = n & 1; Y = X ^ 1
        t = n >> 1
        kq = ((n + 1) >> 1) & 1
        vq = ((n - 1) >> 1) & 1
        rd = rdK((t + 1) & 1, (t + 1) & 3) if X == 0 else rdV((t + 1) & 1, (t + 1) & 3)
        rd = [[rd[0]], [rd[1]]] if reads is True else reads
        E = [f"v_exp_f32 v{S_[X]+k}, v{S_[X]+k}" for k in range(16)]
        C = [f"v_cvt_pk_bf16_f32 v{P_[X]+k}, v{S_[X]+2*k}, v{S_[X]+2*k+1}" for k in range(8)]
        M = [[mf32(S_[Y], KB(kq, 0), QF_(Y, 0), vr(CI[Y], 16))] if qk else [],
             [mf32(S_[Y], KB(kq, 1), QF_(Y, 1), vr(S_[Y], 16))] if qk else [],
             mf32(O_[Y], VB(vq, 0), P_[Y], vr(O_[Y], 16)),
             mf32(O_[Y], VB(vq, 1), P_[Y] + 4, vr(O_[Y], 16)),
             mf16(L_[Y], ONES, P_[Y]),
             mf16(L_[Y], ONES, P_[Y] + 4)]
        seq = M[0] + rd[0] + [E[0], E[1], E[2]] + M[1] + rd[1] + [E[3], E[4], C[0], E[5],
               M[2]] + ex[0] + [E[6], C[1], E[7], E[8], C[2],
               M[3]] + ex[1] + [E[9], E[10], C[3], E[11],
               M[4]] + ex[2] + [E[12], C[4], E[13],
               M[5]] + W + [E[14], C[5], E[15], C[6], C[7]]
        for x in seq: A(x)
    A.raw(".p2align 6")
    A.label(f"{name}_aloop")
    exs = {0: ROT[0], 1: ROT[1], 2: PFS[2], 3: PFS[3], 4: PFS[4], 6: D[0:3], 7: D[3:6]}
    for n in range(8):
        ex = [[x] for x in exs.get(n, [])] + [[], [], []]
        if n == 5: W = ["s_waitcnt vmcnt(10) lgkmcnt(0)", "s_barrier", f"s_cmp_lg_u32 s{sCnt}, 13", f"s_cbranch_scc1 {name}_nf0", flag0, f"{name}_nf0:",
                        f"v_add_u32 v{AR}, s{sSl[1]}, v{AL}"]
        elif n == 3: W = ["s_waitcnt lgkmcnt(0)", f"s_cmp_lg_u32 s{sCnt}, 1", f"s_cbranch_scc1 {name}_np0",
                          f"buffer_load_dword v{FLG}, v{L4}, {S4(S_WS)}, s{sT+9} offen sc1", f"{name}_np0:"]
        elif n == 7: W = ["s_waitcnt lgkmcnt(0)", f"s_cmp_lg_u32 s{sCnt}, 0"]
        else: W = ["s_waitcnt lgkmcnt(0)"]
        halfstep(n, ex, W)
    A(f"s_cbranch_scc1 {name}_aloop")
    assert vm.after("kv1") + 3 >= 10
    vm = VM()
    vm.add("flg"); vm.add("pf"); vm.add("kv15", 4); vm.add("pf", 3); vm.add("kv16", 4)
    A(f"s_cmp_ge_u32 s{sC}, 14")
    A(f"s_cbranch_scc1 {name}_f0ok")
    A(f"s_waitcnt vmcnt({vm.after('flg')})")
    check(A, f"{name}_c0", FLG, sT + 9)
    A.label(f"{name}_f0ok")
    def sdma(u, part):
        if part == 0:
            out = [f"s_add_u32 m0, s{sDm}, {sblock(u) + 16384}"]
            for n in range(4): out.append(f"buffer_load_dwordx4 v{XV+n}, {S4(S_WSP)}, s{sX} offen offset:{n*1024} lds")
            return out
        out = [f"s_add_u32 m0, s{sDm}, {sblock(u)}"]
        for n in range(4): out.append(f"buffer_load_dwordx4 v{L16}, {S4(S_Z)}, s{sZ} offen offset:{n*1024} sc1 lds")
        out += [f"s_add_u32 s{sX}, s{sX}, 128", f"s_add_u32 s{sZ}, s{sZ}, {2*112*1024}"]
        return out
    items = []
    for u in range(2):
        items += [(x, f"u{u}") for x in sdma(u, 0) + sdma(u, 1)]
    for fi in range(4):
        items.append((f"s_add_u32 s{sT+1}, s{sZ1}, {fi*65536}", None))
        for p in range(2):
            items.append((f"buffer_load_dwordx4 {vr(Z1R+(fi*2+p)*4,4)}, v{L16}, {S4(S_WS)}, s{sT+1} offen offset:{p*1024}", "ep"))
    items.append((f"s_lshl_b32 s{sT+1}, s{sBo}, 1", None))
    items.append((f"s_add_u32 s{sT+1}, s{sT+1}, {WS_GATE}", None))
    for ti in range(4):
        items.append((f"buffer_load_ushort v{BV+ti}, v{T+14}, {S4(S_B)}, s{sBo} offen offset:{(ti>>1)*64+(ti&1)*8}", "ep"))
        items.append((f"buffer_load_dword v{GVv+ti}, v{T+15}, {S4(S_WS)}, s{sT+1} offen offset:{(ti>>1)*128+(ti&1)*16}", "ep"))
    items += [(x, "u2") for x in sdma(2, 0) + sdma(2, 1)]
    items += [(x, "u3") for x in sdma(3, 0)]
    items.append((f"s_add_u32 s{sDm}, s{sDm}, {sblock(3)}", None))
    def take():
        out = []
        if not items: return out
        x, tg = items.pop(0); out.append(x)
        if isvm(x): vm.add(tg)
        while items and not isvm(items[0][0]) and " m0," not in items[0][0] and len(out) < 3:
            out.append(items.pop(0)[0])
        return out
    for body in (14, 15):
        for n in range(8):
            if body == 14 and n < 2: ex = [[x] for x in ROT[n][:3]]
            else: ex = [take(), take(), take()]
            if body == 14 and n < 2: ex = [e + take() for e in ex]
            last_reads = body == 15 and n >= 6
            reads = [take(), take()] if last_reads else True
            if body == 14 and n == 5:
                W = [f"s_waitcnt vmcnt({vm.after('kv15')}) lgkmcnt(0)", "s_barrier", f"v_add_u32 v{AR}, s{sSl[1]}, v{AL}"]
            else: W = ["s_waitcnt lgkmcnt(0)"] + take()
            halfstep(n, ex, W, reads=reads, qk=not (body == 15 and n == 7))
    assert not items, len(items)
    stamp(A, 2)
    A.nop(2)
    A(mf32(O_[1], VB(1, 0), P_[1], vr(O_[1], 16)))
    A(mf32(O_[1], VB(1, 1), P_[1] + 4, vr(O_[1], 16)))
    A(mf16(L_[1], ONES, P_[1]))
    A(mf16(L_[1], ONES, P_[1] + 4))
    A(f"s_lshl_b32 s{sT}, s{sQb}, 1")
    A(f"s_lshr_b32 s{sT+1}, s{sW}, 1")
    A(f"s_add_u32 s{sT}, s{sT}, s{sT+1}")
    A(f"s_lshl_b32 s{sF}, s{sT}, 8")
    A(f"s_lshl_b32 s{sT+2}, s{sHead}, 3")
    A(f"s_add_u32 s{sF}, s{sF}, s{sT+2}")
    A(f"s_and_b32 s{sT+1}, s{sW}, 1")
    A(f"s_lshl_b32 s{sT+2}, s{sT+1}, 2")
    A(f"s_add_u32 s{sF}, s{sF}, s{sT+2}")
    A(f"s_add_u32 s{sF}, s{sF}, {WS_F2}")
    A(f"s_mul_i32 s{sT}, s{sT}, 88")
    A(f"s_add_u32 s{sT}, s{sT}, s{sHead}")
    A(f"s_lshl_b32 s{sT}, s{sT}, 13")
    A(f"s_lshl_b32 s{sT+1}, s{sT+1}, 12")
    A(f"s_add_u32 s{sT}, s{sT}, s{sT+1}")
    A(f"s_add_u32 s{sT}, s{sT}, {WS_AF}")
    A(f"v_cmp_eq_u32 vcc, 1, v{T}")
    A.nop(6)
    for X in range(2): A(f"v_cndmask_b32 v{T+8+X}, v{L_[X]}, v{L_[X]+1}, vcc")
    for X in range(2): A(f"v_rcp_f32 v{T+10+X}, v{T+8+X}")
    A.nop(1)
    for X in range(2): A(f"v_mul_f32 v{T+10+X}, v{T+10+X}, v{GV[X]}")
    for X in range(2):
        for k in range(16): A(f"v_mul_f32 v{O_[X]+k}, v{O_[X]+k}, v{T+10+X}")
        for k in range(8): A(f"v_cvt_pk_bf16_f32 v{128+8*X+k}, v{O_[X]+2*k}, v{O_[X]+2*k+1}")
        for c in range(2):
            A(f"buffer_store_dwordx4 {vr(128+8*X+4*c,4)}, v{T+3}, {S4(S_WS)}, s{sT} offen offset:{X*2048+c*512} sc1")
    vm.add("o", 4)
    gen_final_setup_scalar(A)
    A(f"s_cmp_ge_u32 s{sC}, 14")
    A(f"s_cbranch_scc1 {name}_nosp")
    gen_spatial(A, name, vm)
    gen_final(A, name)
    A.label(f"{name}_end")
    A("s_endpgm")
    return kernel_desc(name, 384, 256)

def gen_final_setup_scalar(A):
    A(f"s_lshl_b32 s{sA}, s{sW}, 13")
    A(f"s_add_u32 s{sA2}, s{sA}, 4096")
    A(f"s_lshl_b32 s{sWo}, s{sW}, 16")
    A(f"s_lshl_b32 s{sM}, s{sW}, 12")
    A(f"s_mul_i32 s{sT+1}, s{sTb}, {88*8192}")
    A(f"s_add_u32 s{sT+1}, s{sT+1}, {WS_AF}")
    A(f"s_add_u32 s{S_A}, s{S_WS}, s{sT+1}")
    A(f"s_addc_u32 s{S_A+1}, s{S_WS+1}, 0")
    A(f"s_mov_b32 s{S_A+2}, {88*8192}")
    A(f"s_mov_b32 s{S_A+3}, 0x00020000")
    A(f"s_mov_b32 s{S_W}, s{S_WO}")
    A(f"s_mov_b32 s{S_W+1}, s{S_WO+1}")
    A(f"s_mov_b32 s{S_W+2}, s{S_WO+2}")
    A(f"s_mov_b32 s{S_W+3}, 0x00020000")
    A(f"s_lshl_b32 s{sF2}, s{sTb}, 8")
    A(f"s_add_u32 s{sF1}, s{sF2}, {WS_F1}")
    A(f"s_add_u32 s{sF2}, s{sF2}, {WS_F2}")

def final_setup_v():
    o = [f"v_lshrrev_b32 v{U}, 3, v{LANE}", f"v_lshlrev_b32 v{U}, 11, v{U}", f"v_bfe_u32 v{U+1}, v{LANE}, 1, 2",
         f"v_lshrrev_b32 v{U+2}, 4, v{LANE}", f"v_xor_b32 v{U+1}, v{U+1}, v{U+2}", f"v_lshl_add_u32 v{U}, v{U+1}, 5, v{U}",
         f"v_and_b32 v{U+1}, 1, v{LANE}", f"v_lshl_add_u32 v{U}, v{U+1}, 4, v{U}", f"s_lshl_b32 s{sT+1}, s{sC}, 7",
         f"v_add_u32 v{WV}, s{sT+1}, v{U}"]
    for n in range(1, 4): o.append(f"v_add_u32 v{WV+n}, {n*8*2048 - n*1024}, v{WV}")
    o += [f"v_lshrrev_b32 v{U}, 2, v{LANE}", f"v_bfe_u32 v{U+1}, v{LANE}, 3, 2", f"v_lshlrev_b32 v{U}, 7, v{U}",
          f"v_and_b32 v{U+2}, 3, v{LANE}", f"v_lshl_add_u32 v{U}, v{U+2}, 3, v{U}", f"v_add_u32 v{U}, s{sM}, v{U}"]
    for b in range(4):
        o += [f"v_xor_b32 v{U+2}, {b}, v{U+1}", f"v_lshl_add_u32 v{WRa+b}, v{U+2}, 5, v{U}", f"v_add_u32 v{WRb+b}, 65536, v{WRa+b}"]
    return o

WSLOT = [0, 16384, 65536, 81920]
def dmaw(slot):
    out = [f"s_add_u32 m0, s{sM}, {WSLOT[slot]}"]
    for n in range(4): out.append(f"buffer_load_dwordx4 v{WV+n}, {S4(S_W)}, s{sWo} offen offset:{n*1024} lds")
    return out
def advw(): return [f"s_add_u32 s{sWo}, s{sWo}, {4*65536}"]
def lda(st, ti):
    return f"buffer_load_dwordx4 {ar(aset(st,ti),4)}, v{L16}, {S4(S_A)}, s{sA if ti < 4 else sA2} offen offset:{(ti&3)*1024} sc1"
def adva(): return [f"s_add_u32 s{sA}, s{sA}, 32768", f"s_add_u32 s{sA2}, s{sA2}, 32768"]
def fgroup(st): return dmaw(st) + advw() + [lda(st, ti) for ti in range(8)] + adva()
def rdw(st, slot):
    R = WRa if slot < 2 else WRb
    return [f"ds_read_b64_tr_b16 {vr(wfr(st,b)+2*t,2)}, v{R+b} offset:{(slot&1)*16384+t*2048}" for b in range(4) for t in range(2)]

def gen_spatial(A, name, vm):
    def rot(r): return [f"s_add_u32 s{r}, s{r}, 32768", f"s_cmp_ge_u32 s{r}, 163840", f"s_cselect_b32 s{sT+2}, 131072, 0", f"s_sub_u32 s{r}, s{r}, s{sT+2}"]
    DB = [f"s_add_u32 m0, s{sDm}, 16384"] + [f"buffer_load_dwordx4 v{XV+n}, {S4(S_WSP)}, s{sX} offen offset:{n*1024} lds" for n in range(4)]
    DA = [f"s_mov_b32 m0, s{sDm}"] + [f"buffer_load_dwordx4 v{L16}, {S4(S_Z)}, s{sZ} offen offset:{n*1024} sc1 lds" for n in range(4)]
    ADV = [f"s_add_u32 s{sX}, s{sX}, 128", f"s_add_u32 s{sZ}, s{sZ}, {2*112*1024}"]
    def reads(st, kk):
        XR, ZR = (XRa, ZRa) if kk == 0 else (XRb, ZRb)
        out = []
        for i in range(4):
            out.append(f"ds_read_b128 {vr(saf(st,i),4)}, v{ZR} offset:{kk*8192+i*1024}")
            out.append(f"ds_read_b128 {vr(sbf(st,i),4)}, v{XR} offset:{(i>>1)*4096+(i&1)*512}")
        return out
    def mfmas(st, zero=False):
        return [f"v_mfma_f32_16x16x32_bf16 {vr(sacc(fi,ti),4)}, {vr(saf(st,fi),4)}, {vr(sbf(st,ti),4)}, {'0' if zero else vr(sacc(fi,ti),4)}" for fi in range(4) for ti in range(4)]
    def merge(m, oth):
        assert len(oth) <= len(m), len(oth)
        for k in range(len(m)):
            A(m[k])
            if k < len(oth):
                for x in (oth[k] if isinstance(oth[k], list) else [oth[k]]): A(x)
    R = rot(sRd); RD = rot(sDm)
    def seqA(d, tail):
        rd = reads(1, 1)
        return [rd[0], rd[1], d[0] + R[:2], rd[2], R[2:] + d[1], rd[3], rd[4], d[2], rd[5], rd[6], d[3], rd[7], d[4],
                [f"v_add_u32 v{XRa}, s{sRd}, v{XL}"] + tail[0], [f"v_add_u32 v{ZRa}, s{sRd}, v{ZL}"] + tail[1], tail[2]]
    def seqB(pre, d, tail, rd=True):
        rd = reads(0, 0) if rd else [[]] * 8
        return [rd[0], rd[1], pre, rd[2], d[0], rd[3], rd[4], d[1], rd[5], rd[6], d[2], rd[7], d[3],
                [f"v_add_u32 v{XRb}, s{sRd}, v{XL+1}"] + tail[0], d[4], [f"v_add_u32 v{ZRb}, s{sRd}, v{ZL}"] + tail[1]]
    L = lambda l: [[x] for x in l]
    A(f"s_waitcnt vmcnt({vm.after('u0')})")
    A("s_barrier")
    for x in reads(0, 0): A(x)
    A(f"s_mov_b32 s{sCnt}, 27")
    for x in final_setup_v(): A(x)
    A("s_waitcnt lgkmcnt(0)")
    stamp(A, 3)
    merge(mfmas(0, zero=True), seqA(L(DA), [[], [], ADV]))
    A(f"s_branch {name}_smid")
    A.raw(".p2align 6")
    A.label(f"{name}_sloop")
    merge(mfmas(0), seqA(L(DA), [[], [], ADV]))
    A.label(f"{name}_smid")
    A(f"s_waitcnt vmcnt({8*(NS-2)}) lgkmcnt(0)")
    A("s_barrier")
    merge(mfmas(1), seqB(RD, L(DB), [[f"s_sub_u32 s{sCnt}, s{sCnt}, 1"], [f"s_cmp_lg_u32 s{sCnt}, 24"]]))
    A(f"s_cbranch_scc1 {name}_snf")
    A(f"buffer_store_dword v{ONEV}, v{ZERO}, {S4(S_WS)}, s{sF} offen sc1")
    A.label(f"{name}_snf")
    A(f"s_cmp_lg_u32 s{sCnt}, 3")
    A(f"s_cbranch_scc1 {name}_snp")
    A(f"buffer_load_dword v{FLG}, v{L4}, {S4(S_WS)}, s{sF2} offen sc1")
    A.label(f"{name}_snp")
    A(f"s_cmp_lg_u32 s{sCnt}, -1")
    A("s_waitcnt lgkmcnt(0)")
    A(f"s_cbranch_scc1 {name}_sloop")
    vm = VM()
    vm.add("u29", 8); vm.add("u30", 8); vm.add("u31", 4)
    merge(mfmas(0), seqA(L(DA), [[], [], []])); vm.add("u31", 4)
    A(f"s_waitcnt vmcnt({vm.after('u29')}) lgkmcnt(0)")
    A("s_barrier")
    check(A, f"{name}_c2", FLG, sF2)
    items = []
    for st in range(4): items += [(x, f"g{st}") for x in fgroup(st)]
    def take(k=1):
        out = []
        for _ in range(k):
            if not items: break
            x, tg = items.pop(0); out.append(x)
            if isvm(x): vm.add(tg)
            while items and not isvm(items[0][0]) and " m0," not in items[0][0]:
                out.append(items.pop(0)[0])
        return out
    for u in range(28, 32):
        if u > 28:
            merge(mfmas(0), seqA([take() for _ in range(5)], [take(), take(), take()]))
            if u < 31:
                A(f"s_waitcnt vmcnt({vm.after(f'u{u+1}')}) lgkmcnt(0)")
                A("s_barrier")
            else:
                A("s_waitcnt lgkmcnt(0)")
        tk = [take() for _ in range(8)]
        merge(mfmas(1), seqB(tk[0], [tk[1], tk[2], tk[3], tk[4], tk[6]], [tk[5], tk[7]], rd=(u < 31)))
        if u < 31: A("s_waitcnt lgkmcnt(0)")
    rest = []
    while items: rest += take()
    stamp(A, 4)
    A(f"s_lshr_b32 s{sT+4}, s{sW}, 1")
    A(f"s_lshl_b32 s{sT+4}, s{sT+4}, 1")
    A(f"s_lshl_b32 s{sT+5}, s{sC}, 2")
    A(f"s_add_u32 s{sT+4}, s{sT+4}, s{sT+5}")
    A(f"s_add_u32 s{sT+4}, s{sT+4}, 32")
    A(f"s_lshl_b32 s{sT+4}, s{sT+4}, 13")
    A(f"s_and_b32 s{sT+5}, s{sW}, 1")
    A(f"s_lshl_b32 s{sT+5}, s{sT+5}, 12")
    A(f"s_add_u32 s{sT+4}, s{sT+4}, s{sT+5}")
    A(f"s_add_u32 s{sT+5}, s{sT+4}, 8192")
    emit(A, rest)
    for ti in range(4):
        A(f"v_sub_f32 v{GVv+ti}, 1.0, v{GVv+ti}")
        A(f"v_lshlrev_b32 v{BV+ti}, 16, v{BV+ti}")
        A(f"v_mul_f32 v{BV+ti}, v{BV+ti}, v{GVv+ti}")
    tsel = 0
    for ph in range(2):
        for ti in range(4):
            t = U + 4 + 4 * (tsel % 3); tsel += 1
            for half, fi in enumerate((2 * ph, 2 * ph + 1)):
                z = Z1R + (fi * 2 + (ti >> 1)) * 4 + (ti & 1) * 2
                a = sacc(fi, ti)
                for r in range(4): A(f"v_fma_f32 v{a+r}, v{a+r}, v{GVv+ti}, v{BV+ti}")
                A(f"v_lshlrev_b32 v{U}, 16, v{z}")
                A(f"v_and_b32 v{U+1}, 0xffff0000, v{z}")
                A(f"v_lshlrev_b32 v{U+2}, 16, v{z+1}")
                A(f"v_and_b32 v{U+3}, 0xffff0000, v{z+1}")
                for r in range(4): A(f"v_mul_f32 v{a+r}, v{a+r}, v{U+r}")
                A(f"v_cvt_pk_bf16_f32 v{t+2*half}, v{a}, v{a+1}")
                A(f"v_cvt_pk_bf16_f32 v{t+2*half+1}, v{a+2}, v{a+3}")
            A(f"buffer_store_dwordx4 {vr(t,4)}, v{L16}, {S4(S_A)}, s{sT+4+ph} offen offset:{ti*1024} sc1")
    A(f"s_lshl_b32 s{sT+4}, s{sC}, 4")
    A(f"s_add_u32 s{sF}, s{sF1}, s{sT+4}")
    A(f"s_lshl_b32 s{sT+4}, s{sW}, 2")
    A(f"s_add_u32 s{sF}, s{sF}, s{sT+4}")
    A(f"s_branch {name}_fin")
    A.label(f"{name}_nosp")
    stamp(A, 3); stamp(A, 4)
    for x in final_setup_v(): A(x)
    A("s_waitcnt vmcnt(0)")
    A(f"buffer_store_dword v{ONEV}, v{ZERO}, {S4(S_WS)}, s{sF} offen sc1")
    A(f"v_mov_b32 v{FLG}, 0")
    check(A, f"{name}_c2b", FLG, sF2)
    A("s_barrier")
    for st in range(4): emit(A, fgroup(st))
    for k in range(8): A(f"buffer_load_dword v{U}, v{L4}, {S4(S_WS)}, s{sF2} offen")
    A.label(f"{name}_fin")

def gen_final(A, name):
    DEP = 4
    A(f"s_waitcnt vmcnt({12*DEP-4+8})")
    for x in rdw(0, 0): A(x)
    A(f"s_mov_b32 s{sCnt}, 4")
    stamp(A, 5)
    def step(q, pf, nwait, extra=[], rd=True, zero=False, pre=[]):
        st = q % DEP
        A(f"s_waitcnt vmcnt({nwait}) lgkmcnt(0)")
        for x in pre: A(x)
        M = [f"v_mfma_f32_16x16x32_bf16 {vr(facc(ti,nb),4)}, {vr(wfr(q&1,nb),4)}, {ar(aset(st,ti),4)}, {'0' if zero else vr(facc(ti,nb),4)}" for ti in range(8) for nb in range(4)]
        gaps = [[] for _ in range(32)]
        if rd:
            for k, x in enumerate(rdw((q + 1) & 1, (q + 1) % 4)): gaps[1 + 2 * k if k < 4 else 2 + 2 * k].append(x)
        if pf:
            for k, x in enumerate(dmaw(q % 4)): gaps[2 * k].append(x)
            gaps[9] += advw()
            pos = [11, 13, 15, 17, 20, 24, 28, 31]
            for ti in range(8): gaps[pos[ti]].append(lda(st, ti))
        for k, x in enumerate(extra): gaps[19 + k * 2].append(x)
        for k in range(32):
            A(M[k])
            for x in gaps[k]: A(x)
        if pf:
            for x in adva(): A(x)
    step(0, True, 8 + 24 + 8, zero=True)
    step(1, True, 12, pre=[f"buffer_store_dword v{ONEV}, v{ZERO}, {S4(S_WS)}, s{sF} offen sc1"])
    step(2, True, 25)
    step(3, True, 32, pre=[f"buffer_load_dword v{FLG}, v{L4}, {S4(S_WS)}, s{sF1} offen sc1"])
    for x in [f"s_mov_b32 s{S_W}, s{S_WOUT}", f"s_mov_b32 s{S_W+1}, s{S_WOUT+1}", f"s_mov_b32 s{S_W+2}, s{S_WOUT+2}", f"s_sub_u32 s{sWo}, s{sWo}, {32*65536}"]: A(x)
    A("s_waitcnt vmcnt(12)")
    check(A, f"{name}_c1", FLG, sF1, mask=0x00ffffff)
    A.raw(".p2align 6")
    A.label(f"{name}_floop")
    for q in range(4):
        step(q, True, 32, extra=[f"s_sub_u32 s{sCnt}, s{sCnt}, 1"] if q == 3 else [])
    A(f"s_cmp_lg_u32 s{sCnt}, 0")
    A(f"s_cbranch_scc1 {name}_floop")
    step(0, False, 32)
    step(1, False, 24, rd=False)
    A.nop(8)
    stamp(A, 6)
    A("s_waitcnt vmcnt(0)")
    A("s_barrier")
    for w in range(4):
        A(f"s_cmp_lg_u32 s{sW}, {w}")
        A(f"s_cbranch_scc1 {name}_red{w}")
        for d in range(4):
            if d == w: continue
            kk = (w - d - 1) & 3
            A(f"v_add_u32 v{U}, {d*24576 + kk*8192}, v{L16}")
            for e in range(2):
                for nb in range(4):
                    A(f"ds_write_b128 v{U}, {vr(facc(2*d+e,nb),4)} offset:{(e*4+nb)*1024}")
        A("s_waitcnt lgkmcnt(0)")
        A("s_barrier")
        A(f"v_add_u32 v{U}, {w*24576}, v{L16}")
        oth = [r for r in range(0, 128, 4) if not (facc(2*w,0) <= r < facc(2*w,0) + 32)]
        for k in range(24): A(f"ds_read_b128 {vr(oth[k],4)}, v{U} offset:{k*1024}")
        for kk in range(3):
            A(f"s_waitcnt lgkmcnt({min(15, 16 - 8*kk) if kk < 2 else 0})")
            for i in range(8):
                a = facc(2*w,0) + 4 * i
                for h in range(2): A(f"v_pk_add_f32 {vr(a+2*h,2)}, {vr(a+2*h,2)}, {vr(oth[kk*8+i]+2*h,2)}")
        for i in range(8):
            a = facc(2*w,0) + 4 * i
            A(f"v_cvt_pk_bf16_f32 v{128+2*i}, v{a}, v{a+1}")
            A(f"v_cvt_pk_bf16_f32 v{128+2*i+1}, v{a+2}, v{a+3}")
        A(f"s_branch {name}_out")
        A.label(f"{name}_red{w}")
    A("s_endpgm")
    A.label(f"{name}_out")
    A(f"v_and_b32 v{U}, 15, v{LANE}")
    A(f"v_lshrrev_b32 v{U+1}, 2, v{U}")
    A(f"v_lshlrev_b32 v{U+1}, 3, v{U+1}")
    A(f"v_and_b32 v{U}, 3, v{U}")
    A(f"v_add_u32 v{U}, v{U}, v{U+1}")
    A(f"v_lshlrev_b32 v{U}, 11, v{U}")
    A(f"v_lshrrev_b32 v{U+1}, 4, v{LANE}")
    A(f"v_lshl_add_u32 v{U}, v{U+1}, 3, v{U}")
    A(f"s_lshl_b32 s{sT}, s{sTb}, 2")
    A(f"s_add_u32 s{sT}, s{sT}, s{sW}")
    A(f"s_lshl_b32 s{sT}, s{sT}, 16")
    A(f"s_lshl_b32 s{sT+1}, s{sC}, 7")
    A(f"s_add_u32 s{sT}, s{sT}, s{sT+1}")
    A(f"s_add_u32 s{sT+1}, s{sT}, 8192")
    for e in range(2):
        for nb in range(4):
            i = e * 4 + nb
            A(f"buffer_store_dwordx2 {vr(128+2*i,2)}, v{U}, {S4(S_O)}, s{sT+e} offen offset:{nb*32}")
    stamp_flush(A, 8, S_WS, 2, U + 4)
```

```python
import sys
from asmlib import *
from k1 import gen_k1
from k1b import gen_k1b

HEAD = open("gated_mix__mha_block__mixer_gmlp__prompt.s.ref").read().split("; Override launch geometry")[0]

def build(kernels):
    A = Asm()
    hdr = HEAD
    descs = []
    for name, fn, grid, block, lds in kernels:
        hdr += f"; @launch kernel={name} grid=({grid},1,1) block=({block},1,1) lds={lds}\n"
    A.raw('.amdgcn_target "amdgcn-amd-amdhsa--gfx950"')
    A.raw(".text")
    for name, fn, grid, block, lds in kernels:
        descs.append(fn(A, name))
    A.raw('.section .rodata,"a"')
    out = hdr + A.text()
    for d in descs:
        out += ".p2align 6\n" + d
    return out

if __name__ == "__main__":
    from k2q import gen_k2q as gen_k2p, K2Q_LDS as K2P_LDS
    ks = [("k1_kernel", gen_k1, 256, 256, 163840), ("k2_kernel", gen_k2p, 256, 256, K2P_LDS)]
    dst = sys.argv[1] if len(sys.argv) > 1 else "gated_mix__mha_block__mixer_gmlp__prompt.s"
    open(dst, "w").write(build(ks))
    print("wrote", dst)
```
